```python
import torch

def _softmax(x, axis=-1):
    return torch.softmax(x, dim=axis)
def _gelu(x):
    return torch.nn.functional.gelu(x, approximate="tanh")
def _silu(x):
    return torch.nn.functional.silu(x)
def _sigmoid(x):
    return torch.sigmoid(x)
def _layernorm(x, axis=-1, eps=1e-5):
    m = x.mean(dim=axis, keepdim=True)
    v = x.var(dim=axis, keepdim=True, unbiased=False)
    return (x - m) / torch.sqrt(v + eps)
def _scatter_add(tgt, idx, src, axis=0):
    return tgt.clone().index_add_(axis, idx, src)
def _segment_sum(src, seg, n):
    out = torch.zeros((n,) + src.shape[1:], dtype=src.dtype)
    return out.index_add_(0, seg, src)
def _pad(x, pw):
    flat = tuple(v for pair in reversed(pw) for v in pair)
    return torch.nn.functional.pad(x, flat)

kernel_name = 'concat_heads__mha_block_cached__mha_block_cached__near_ridge'

def setup_inputs():

    _w = (lambda a: (lambda t: t.to(torch.bfloat16) if t.is_floating_point() else t)(torch.as_tensor(a)))
    def _A_setup():
        B, Sq, D = 8, 144, 512
        H, Sk, Dh = 32, 1024, 128
        return {
            "x": _w((lambda *s: torch.randn(*s, dtype=torch.bfloat16) * 0.8)(B, Sq, D)),
            "k_cache": _w((lambda *s: torch.randn(*s, dtype=torch.bfloat16) * 0.8)(B, H, Sk, Dh)),
            "v_cache": _w((lambda *s: torch.randn(*s, dtype=torch.bfloat16) * 0.05)(B, H, Sk, Dh)),
            "wq": _w((lambda *s: torch.randn(*s, dtype=torch.bfloat16) * 0.8)(D, H * Dh) * (D ** -0.5)),
            "wo": _w((lambda *s: torch.randn(*s, dtype=torch.bfloat16) * 0.05)(H * Dh, D) * ((H * Dh) ** -0.5)),
        }
    _A_in = _A_setup()

    def _B_setup():
        B, Sq, D = 8, 144, 512
        H, Sk, Dh = 32, 1024, 128
        return {
            "x": _w((lambda *s: torch.randn(*s, dtype=torch.bfloat16) * 0.8)(B, Sq, D)),
            "k_cache": _w((lambda *s: torch.randn(*s, dtype=torch.bfloat16) * 0.8)(B, H, Sk, Dh)),
            "v_cache": _w((lambda *s: torch.randn(*s, dtype=torch.bfloat16) * 0.05)(B, H, Sk, Dh)),
            "wq": _w((lambda *s: torch.randn(*s, dtype=torch.bfloat16) * 0.8)(D, H * Dh) * (D ** -0.5)),
            "wo": _w((lambda *s: torch.randn(*s, dtype=torch.bfloat16) * 0.05)(H * Dh, D) * ((H * Dh) ** -0.5)),
        }
    _B_in = _B_setup()

    return {
        "A_x": _A_in["x"],
        "A_k_cache": _A_in["k_cache"],
        "A_v_cache": _A_in["v_cache"],
        "A_wq": _A_in["wq"],
        "A_wo": _A_in["wo"],
        "B_x": _B_in["x"],
        "B_k_cache": _B_in["k_cache"],
        "B_v_cache": _B_in["v_cache"],
        "B_wq": _B_in["wq"],
        "B_wo": _B_in["wo"],
    }

def reference(A_x, A_k_cache, A_v_cache, A_wq, A_wo, B_x, B_k_cache, B_v_cache, B_wq, B_wo):
    def _A_ref(x, k_cache, v_cache, wq, wo):
        B, Sq, D = x.shape
        H, Dh = 32, 128
        q = (lambda x, *d: x.permute(*d))((x @ wq).reshape(B, Sq, H, Dh), 0, 2, 1, 3)
        scores = torch.einsum("bhqd,bhkd->bhqk", q, k_cache) * (Dh ** -0.5)
        p = _softmax(scores, axis=-1)
        o = torch.einsum("bhqk,bhkd->bhqd", p, v_cache)
        return (lambda x, *d: x.permute(*d))(o, 0, 2, 1, 3).reshape(B, Sq, H * Dh) @ wo

    def _B_ref(x, k_cache, v_cache, wq, wo):
        B, Sq, D = x.shape
        H, Dh = 32, 128
        q = (lambda x, *d: x.permute(*d))((x @ wq).reshape(B, Sq, H, Dh), 0, 2, 1, 3)
        scores = torch.einsum("bhqd,bhkd->bhqk", q, k_cache) * (Dh ** -0.5)
        p = _softmax(scores, axis=-1)
        o = torch.einsum("bhqk,bhkd->bhqd", p, v_cache)
        return (lambda x, *d: x.permute(*d))(o, 0, 2, 1, 3).reshape(B, Sq, H * Dh) @ wo

    a = _A_ref(A_x, A_k_cache, A_v_cache, A_wq, A_wo)
    b = _B_ref(B_x, B_k_cache, B_v_cache, B_wq, B_wo)
    return torch.concatenate([a, b], axis=-1)
```

```python
import re
TRANS = ('v_exp_f32','v_log_f32','v_rcp_f32','v_rsq_f32','v_sqrt_f32')
def regs(tok):
    tok = tok.strip()
    m = re.match(r'^-?\|?v\[(\d+):(\d+)\]\|?$', tok)
    if m: return [('v',i) for i in range(int(m.group(1)), int(m.group(2))+1)]
    m = re.match(r'^-?\|?v(\d+)\|?$', tok)
    if m: return [('v',int(m.group(1)))]
    m = re.match(r'^s\[(\d+):(\d+)\]$', tok)
    if m: return [('s',i) for i in range(int(m.group(1)), int(m.group(2))+1)]
    m = re.match(r'^s(\d+)$', tok)
    if m: return [('s',int(m.group(1)))]
    if tok == 'vcc': return [('s','vcc')]
    if tok == 'm0': return [('s','m0')]
    if tok == 'exec': return [('s','exec')]
    return []
class I:
    def __init__(s, text):
        s.text = text
        t = text.split(';')[0].strip()
        s.label = t.endswith(':')
        s.op = t.split()[0] if t else ''
        rest = t[len(s.op):].strip()
        ops = [o.strip() for o in rest.split(',')] if rest else []
        if ops:
            ops[-1] = ops[-1].split()[0] if ops[-1] else ops[-1]
        s.ops = ops
        op = s.op
        s.kind = 'other'; s.w = []; s.r = []; s.c = []
        R = [regs(o) for o in ops]
        if s.label or not op or op.startswith('.'):
            s.kind = 'none'
        elif op.startswith('v_mfma'):
            s.kind = 'mfma'; s.w = R[0]; s.r = R[1]+R[2]; s.c = R[3]
        elif op.startswith('v_permlane'):
            s.kind = 'valu'; s.w = R[0]+R[1]; s.r = R[0]+R[1]
        elif op.startswith('v_'):
            s.kind = 'valu'; s.w = R[0]; s.r = sum(R[1:], [])
            if op.startswith('v_cndmask') and len(ops) == 3: s.r += [('s','vcc')]
            if op in ('v_fmac_f32',): s.r += R[0]
        elif op.startswith('ds_read') or op.startswith('ds_bpermute'):
            s.kind = 'ds'; s.w = R[0]; s.r = sum(R[1:], [])
        elif op.startswith('ds_'):
            s.kind = 'ds'; s.r = sum(R, [])
        elif op.startswith('buffer_load') or op.startswith('global_load'):
            s.kind = 'vmem'
            if ' lds' in t: s.r = sum(R, []) + [('s','m0')]; s.dma = True
            else: s.w = R[0]; s.r = sum(R[1:], [])
        elif op.startswith('buffer_') or op.startswith('global_'):
            s.kind = 'vmem'; s.r = sum(R, [])
            s.store = op.endswith('x4') or op.endswith('x3')
            s.sdata = R[0]
        elif op.startswith('s_'):
            s.kind = 'salu'
            if op in ('s_nop','s_waitcnt','s_barrier','s_branch','s_endpgm','s_setprio') or op.startswith('s_cbranch'):
                pass
            elif op.startswith('s_cmp') or op.startswith('s_bitcmp'):
                s.r = sum(R, [])
            else:
                s.w = R[0]; s.r = sum(R[1:], [])
    def states(s):
        if s.kind == 'none': return 0
        if s.op == 's_nop': return int(s.ops[0], 0) + 1
        return 1
def need(p, c):
    n = 0
    pw = set(p.w); cr = set(c.r); cw = set(c.w); cc = set(c.c)
    vw = set(x for x in pw if x[0] == 'v'); sw = set(x for x in pw if x[0] == 's')
    if p.kind == 'valu':
        if c.kind == 'mfma' and vw & (cr | cc): n = max(n, 2)
        if p.op in TRANS and c.kind in ('valu',) and vw & (cr|cw): n = max(n, 1)
        if p.op in TRANS and c.kind == 'mfma' and vw & (cr|cc): n = max(n, 2)
        if c.op.startswith('v_permlane') and vw & cr: n = max(n, 2)
        if (c.op.startswith('v_readfirstlane') or c.op.startswith('v_readlane')) and vw & cr: n = max(n, 1)
        if c.kind == 'vmem' and sw & cr: n = max(n, 5)
        if c.kind == 'valu' and sw & cr: n = max(n, 2)
        if c.op.startswith('s_cbranch_vcc') and ('s','vcc') in sw: n = max(n, 5)
        if c.kind == 'salu' and sw & cr: n = max(n, 2)
    if p.kind == 'mfma':
        if c.kind == 'mfma':
            if vw & cr: n = max(n, 8)
            if vw & cc and (p.w != c.c): n = max(n, 6)
            if vw & cw and not (p.w == c.w): n = max(n, 6)
        elif c.kind == 'valu':
            if vw & (cr | cw): n = max(n, 8)
            if set(p.c) & cw: n = max(n, 3)
        elif c.kind in ('ds', 'vmem'):
            if vw & (cr | cw): n = max(n, 8)
            if set(p.c) & cw: n = max(n, 3)
    if p.kind == 'salu' and ('s','m0') in sw and getattr(c, 'dma', False): n = max(n, 1)
    if p.kind == 'vmem' and getattr(p, 'store', False) and c.kind in ('valu','mfma') and set(p.sdata) & cw: n = max(n, 2)
    return n
def fix(lines):
    out = []; hist = []
    for t in lines:
        c = I(t)
        if c.kind == 'none':
            out.append(t); continue
        dist = 0; req = 0
        for p in reversed(hist):
            k = need(p, c) - dist
            if k > req: req = k
            dist += p.states()
            if dist > 12: break
        if req > 0:
            nop = 's_nop %d' % (req - 1)
            out.append('  ' + nop); hist.append(I(nop))
        out.append('  ' + t if not t.startswith(' ') else t); hist.append(c)
        if len(hist) > 40: hist = hist[-20:]
    return out
class Asm:
    def __init__(s): s.l = []
    def __call__(s, t, *a):
        for x in t.strip().split('\n'):
            x = x.strip()
            if x: s.l.append(x)
    def text(s): return '\n'.join(fix(s.l)) + '\n'
def vr(a, n=1):
    return 'v%d' % a if n == 1 else 'v[%d:%d]' % (a, a+n-1)
```

```python
from asmlib import *
def k2(A2, OPT):
    a = A2()
    ACC = lambda qi, tau: (qi*4+tau)*4
    BF = lambda st, qi: 80 + (st*5+qi)*4
    AF = lambda st, tau: 140 + (st*4+tau)*4
    VL16=172; VW=173; VA=174; LANE=178; T=179
    a(f'''s_cmp_ge_u32 s2, 256
    s_cbranch_scc1 K2_EXIT
    s_and_b32 s4, s2, 7
    s_lshr_b32 s5, s2, 3
    s_and_b32 s6, s4, 1
    s_lshr_b32 s7, s4, 2
    s_lshl_b32 s7, s7, 3
    s_lshr_b32 s8, s5, 2
    s_add_u32 s7, s7, s8
    s_cmp_ge_u32 s7, 15
    s_cbranch_scc1 K2_EXIT
    s_bfe_u32 s8, s4, 0x10001
    s_lshl_b32 s8, s8, 2
    s_and_b32 s9, s5, 3
    s_add_u32 s8, s8, s9
    s_mul_i32 s9, s6, 40
    s_add_u32 s10, s0, s9
    s_addc_u32 s11, s1, 0
    s_load_dwordx2 s[12:13], s[10:11], 32
    s_load_dwordx2 s[14:15], s[0:1], 80
    s_load_dwordx2 s[16:17], s[0:1], 96
    v_and_b32 v{LANE}, 63, v0
    v_lshrrev_b32 v1, 6, v0
    v_lshlrev_b32 v{VL16}, 4, v{LANE}
    v_readfirstlane_b32 s3, v1
    v_lshrrev_b32 v1, 3, v{LANE}
    v_and_b32 v2, 7, v{LANE}
    v_lshrrev_b32 v3, 4, v{LANE}
    v_lshlrev_b32 v4, 1, v3
    v_xor_b32 v2, v2, v4
    v_lshlrev_b32 v2, 4, v2
    v_lshl_add_u32 v{VW}, v1, 10, v2
    v_bfe_u32 v1, v{LANE}, 2, 2
    v_lshl_add_u32 v2, v3, 2, v1
    v_lshrrev_b32 v4, 1, v2
    v_and_b32 v4, 3, v4
    v_lshlrev_b32 v4, 1, v4
    v_bfe_u32 v5, v{LANE}, 1, 1
    v_xor_b32 v4, v4, v5
    v_lshlrev_b32 v4, 4, v4
    v_and_b32 v5, 1, v{LANE}
    v_lshl_add_u32 v4, v5, 3, v4
    v_lshl_add_u32 v4, v2, 7, v4
    s_mul_i32 s18, s3, 12288
    v_add_u32 v4, s18, v4''')
    for tau in range(4): a(f'v_xor_b32 v{VA+tau}, {32*tau}, v4')
    for i in range(80): a(f'v_mov_b32 v{i}, 0')
    a('''s_waitcnt lgkmcnt(0)
    s_mul_i32 s9, s6, 9437184
    s_add_u32 s20, s16, s9
    s_addc_u32 s21, s17, 0
    s_mov_b32 s22, 9437184
    s_mov_b32 s23, 0x20000
    s_lshl_b32 s9, s8, 7
    s_add_u32 s24, s12, s9
    s_addc_u32 s25, s13, 0
    s_mov_b32 s26, 4194304
    s_mov_b32 s27, 0x20000
    s_lshl_b32 s19, s6, 10
    s_add_u32 s9, s9, s19
    s_add_u32 s28, s14, s9
    s_addc_u32 s29, s15, 0
    s_sub_u32 s30, 2359296, s9
    s_mov_b32 s31, 0x20000
    s_mul_i32 s32, s7, 655360
    s_lshl_b32 s9, s3, 14
    s_add_u32 s32, s32, s9
    s_lshl_b32 s33, s3, 19''')
    def issue(n):
        st = n % 3
        for j in range(4):
            a(f's_add_u32 m0, s18, {st*4096+j*1024}\ns_add_u32 s34, s33, {n*32768+j*8192}\nbuffer_load_dwordx4 v{VW}, s[24:27], s34 offen lds')
        for qi in range(5):
            a(f's_add_u32 s34, s32, {n*1024+qi*131072}\nbuffer_load_dwordx4 {vr(BF(st,qi),4)}, v{VL16}, s[20:23], s34 offen')
    def reads(n):
        for tau in range(4):
            for H in range(2):
                a(f'ds_read_b64_tr_b16 {vr(AF(n&1,tau)+2*H,2)}, v{VA+tau} offset:{(n%3)*4096+H*2048}')
    issue(0); issue(1); issue(2)
    a('s_waitcnt vmcnt(18)')
    reads(0)
    for n in range(16):
        if n < 15:
            rem = min(n + 2, 15) - (n + 1)
            a(f's_waitcnt vmcnt({9*rem})\ns_waitcnt lgkmcnt(0)')
            reads(n + 1)
        else:
            a('s_waitcnt lgkmcnt(0)')
        for qi in range(5):
            for tau in range(4):
                a(f'v_mfma_f32_16x16x32_bf16 {vr(ACC(qi,tau),4)}, {vr(AF(n&1,tau),4)}, {vr(BF(n%3,qi),4)}, {vr(ACC(qi,tau),4)}')
        if n + 3 < 16: issue(n + 3)
    a(f's_barrier\ns_mul_i32 s9, s3, 20480\nv_add_u32 v{T}, s9, v{VL16}\ns_nop 7')
    for qi in range(5):
        for tau in range(4):
            a(f'ds_write_b128 v{T}, {vr(ACC(qi,tau),4)} offset:{(qi*4+tau)*1024}')
    a(f'''s_waitcnt lgkmcnt(0)
    s_barrier
    v_and_b32 v1, 15, v{LANE}
    v_lshrrev_b32 v2, 4, v{LANE}
    v_lshrrev_b32 v3, 1, v2
    v_and_b32 v4, 1, v2
    v_lshlrev_b32 v5, 4, v1
    v_lshl_add_u32 v5, v4, 9, v5
    v_lshl_add_u32 v5, v3, 10, v5
    v_lshlrev_b32 v6, 11, v1
    v_lshl_add_u32 v6, v2, 4, v6
    s_mov_b32 s35, s3
    K2_TASK:
    s_lshr_b32 s36, s35, 1
    s_and_b32 s37, s35, 1
    s_lshl_b32 s9, s36, 12
    s_lshl_b32 s19, s37, 11
    s_add_u32 s9, s9, s19
    v_add_u32 v7, s9, v5
    v_add_u32 v8, 0x10000, v7
    v_add_u32 v9, 0x20000, v7''')
    for w in range(8):
        off = w*20480
        reg = 7 + off // 65536; off = off % 65536
        for e in range(2):
            a(f'ds_read_b128 {vr(16+(w*2+e)*4,4)}, v{reg} offset:{off+e*256}')
    a('s_waitcnt lgkmcnt(0)')
    for w in range(1, 8):
        for i in range(8): a(f'v_add_f32 v{16+i}, v{16+i}, v{16+w*8+i}')
    a('''v_cvt_pk_bf16_f32 v12, v16, v17
    v_cvt_pk_bf16_f32 v13, v18, v19
    v_cvt_pk_bf16_f32 v14, v20, v21
    v_cvt_pk_bf16_f32 v15, v22, v23
    s_mul_i32 s9, s7, 5
    s_add_u32 s9, s9, s36
    s_lshl_b32 s9, s9, 15
    s_lshl_b32 s19, s37, 6
    s_add_u32 s9, s9, s19
    buffer_store_dwordx4 v[12:15], v6, s[28:31], s9 offen
    s_add_u32 s35, s35, 8
    s_cmp_lt_u32 s35, 10
    s_cbranch_scc1 K2_TASK
    s_waitcnt vmcnt(0)
    K2_EXIT:
    s_endpgm''')
    return a.text(), 163840, 256, 184
```

```python
import sys
from asmlib import *
NAME = 'concat_heads__mha_block_cached__mha_block_cached__near_ridge'
STG = 98304; CH = 17408; LDS1 = STG + 3*CH
OPT = dict(nt='', prio=0)
for a in sys.argv[2:]:
    k, v = a.split('='); OPT[k] = v
NTF = ' nt' if OPT['nt'] == '1' else ''
L0=96; Q0=108; S0=156; NM=180; FR=192; KA=224; VA=228; ONES=236; VE=240; VO=241; L16=242; AQ=243; LANE=244; T0=245; TM=252
def srd(a, base, nrec):
    a(f's_mov_b32 s{base+2}, {nrec}\ns_mov_b32 s{base+3}, 0x20000')
def k1_dma_kv(a):
    a('s_lshl_b32 s60, s3, 12\ns_add_u32 s61, s28, s60\ns_add_u32 s60, s27, s60\ns_mov_b32 m0, s61')
    for j in range(4):
        a(f'buffer_load_dwordx4 v{VE if j%2==0 else VO}, s[4:7], s60 offen offset:{j*1024}{NTF} lds')
    a('s_add_u32 m0, s61, 16384')
    for j in range(4):
        a(f'buffer_load_dwordx4 v{VE if j%2==0 else VO}, s[8:11], s60 offen offset:{j*1024}{NTF} lds')
    lab = a.lab()
    a(f'''s_add_u32 s28, s28, 32768
    s_cmp_eq_u32 s28, 98304
    s_cselect_b32 s28, 0, s28
    s_add_u32 s27, s27, 16384
    s_cmp_lg_u32 s27, 262144
    s_cbranch_scc1 {lab}
    s_mov_b32 s27, 0
    s_mov_b32 s4, s42
    s_mov_b32 s5, s43
    s_mov_b32 s8, s46
    s_mov_b32 s9, s47
    s_add_u32 s29, s29, 1
    s_cmp_eq_u32 s29, 1
    s_cselect_b32 s6, 262144, 0
    s_cselect_b32 s10, 262144, 0
    {lab}:''')
def k1_dma_proj(a, c):
    base = STG + (c % 3) * CH
    a(f's_add_u32 m0, s67, {base}\ns_add_u32 s60, s66, {c*64}\nbuffer_load_dwordx4 v{VE}, s[12:15], s60 offen lds')
    a(f's_add_u32 m0, s67, {base+4096}\ns_add_u32 s60, s66, {c*64+4*16384}\nbuffer_load_dwordx4 v{VE}, s[12:15], s60 offen lds')
    a(f's_mov_b32 m0, {base+8192}\ns_mov_b32 s60, {c*64+8*16384}\ns_mov_b64 exec, s[68:69]\nbuffer_load_dwordx4 v{VE}, s[12:15], s60 offen lds\ns_mov_b64 exec, -1')
    a(f's_add_u32 m0, s71, {base+9216}\ns_add_u32 s60, s70, {c*32*8192}\nbuffer_load_dwordx4 v{VO}, s[16:19], s60 offen lds')
    a(f's_add_u32 m0, s71, {base+9216+1024}\ns_add_u32 s60, s70, {c*32*8192+4*8192}\nbuffer_load_dwordx4 v{VO}, s[16:19], s60 offen lds')
def k1_qproj(a, NQ, kvload):
    q0 = 0 if kvload else 5
    ACC = lambda T, qi: (T*5+qi)*4
    AF = lambda st, T: 40 + st*8 + T*4
    BF = lambda st, qi: 56 + st*20 + qi*4
    for i in range(40): a(f'v_mov_b32 v{i}, 0')
    def reads(c):
        st = c & 1; base = (c % 3) * CH
        for T in range(2):
            for H in range(2):
                a(f'ds_read_b64_tr_b16 {vr(AF(st,T)+2*H,2)}, v{AQ} offset:{base+9216+H*1024+T*8}')
        for qi in range(NQ):
            a(f'ds_read_b128 {vr(BF(st,qi),4)}, v{T0} offset:{base+(q0+qi)*1024}')
    a(f'v_add_u32 v{T0}, {STG}, v{L16}')
    if not kvload:
        for c in range(3): k1_dma_proj(a, c)
        a('s_waitcnt vmcnt(10)')
    a('s_barrier')
    reads(0)
    for c in range(16):
        if c < 15:
            if not kvload: a(f's_waitcnt vmcnt({5 if c < 14 else 0})')
            a('s_waitcnt lgkmcnt(0)\ns_barrier')
            if not kvload and c + 3 < 16: k1_dma_proj(a, c + 3)
            reads(c + 1)
        else:
            a('s_waitcnt lgkmcnt(0)')
        st = c & 1
        for qi in range(NQ):
            for T in range(2):
                a(f'v_mfma_f32_16x16x32_bf16 {vr(ACC(T,qi),4)}, {vr(AF(st,T),4)}, {vr(BF(st,qi),4)}, {vr(ACC(T,qi),4)}')
    a('s_barrier')
    a(f's_and_b32 s60, s3, 3\ns_lshl_b32 s60, s60, 10\ns_add_u32 s60, s60, {STG}\nv_add_u32 v{T0}, s60, v{L16}')
    for qi in range(NQ):
        for T in range(2):
            for i in range(4): a(f'v_mul_f32 v{ACC(T,qi)+i}, s65, v{ACC(T,qi)+i}')
        d = 40 + qi*4
        a(f'''v_cvt_pk_bf16_f32 v{d}, v{ACC(0,qi)}, v{ACC(0,qi)+1}
        v_cvt_pk_bf16_f32 v{d+1}, v{ACC(0,qi)+2}, v{ACC(0,qi)+3}
        v_cvt_pk_bf16_f32 v{d+2}, v{ACC(1,qi)}, v{ACC(1,qi)+1}
        v_cvt_pk_bf16_f32 v{d+3}, v{ACC(1,qi)+2}, v{ACC(1,qi)+3}
        ds_write_b128 v{T0}, {vr(d,4)} offset:{(q0+qi)*4096}''')
    a('s_waitcnt lgkmcnt(0)\ns_barrier')
def k1_variant(a, NT, kvload, tag):
    NQ = 5 if kvload else 4
    O = lambda t, qi: (t*NT+qi)*4
    Q = lambda qi, s: Q0 + (qi*4+s)*4
    S = lambda qi, kt: S0 + qi*8 + kt*4
    F = lambda n: FR + n*4
    a(f'K1_{tag}:')
    if kvload:
        a(f'''v_lshrrev_b32 v{T0}, 4, v{LANE}
        v_and_b32 v{T0+1}, 15, v{LANE}
        v_lshlrev_b32 v{T0+2}, 1, v{T0}
        v_xor_b32 v{T0+3}, v{T0+1}, v{T0+2}
        v_lshlrev_b32 v{T0+3}, 4, v{T0+3}
        v_lshl_add_u32 v{VE}, v{T0}, 8, v{T0+3}
        v_xor_b32 v{VO}, 128, v{VE}''')
        for _ in range(3): k1_dma_kv(a)
    else:
        a(f'''v_lshrrev_b32 v{T0}, 4, v{LANE}
        v_and_b32 v{T0+1}, 15, v{LANE}
        v_lshlrev_b32 v{T0+2}, 4, v{T0}
        v_lshl_add_u32 v{VE}, v{T0+1}, 10, v{T0+2}
        v_lshlrev_b32 v{T0+2}, 2, v{T0}
        v_xor_b32 v{T0+3}, v{T0+1}, v{T0+2}
        v_lshlrev_b32 v{T0+3}, 4, v{T0+3}
        v_lshl_add_u32 v{VO}, v{T0}, 13, v{T0+3}
        s_and_b32 s60, s3, 3
        s_lshl_b32 s66, s60, 14
        s_lshl_b32 s67, s60, 10
        s_lshl_b32 s70, s60, 16
        s_lshl_b32 s71, s60, 11
        s_lshl_b32 s61, s60, 4
        s_mov_b64 s[68:69], 0xffff
        s_lshl_b64 s[68:69], s[68:69], s61''')
    a(f'UNIT_{tag}:')
    a('''s_cmp_eq_u32 s24, 0
    s_cselect_b32 s12, s48, s50
    s_cselect_b32 s13, s49, s51
    s_cselect_b32 s16, s52, s54
    s_cselect_b32 s17, s53, s55
    s_mul_i32 s60, s24, 9437184
    s_add_u32 s20, s56, s60
    s_addc_u32 s21, s57, 0''')
    k1_qproj(a, NQ, kvload)
    a(f's_lshl_b32 s60, s35, 12\ns_add_u32 s60, s60, {STG}\nv_add_u32 v{T0}, s60, v{L16}')
    for qi in range(NT):
        for s in range(4): a(f'ds_read_b128 {vr(Q(qi,s),4)}, v{T0} offset:{(qi*4+s)*1024}')
    for i in range(32*NT): a(f'v_mov_b32 v{i}, 0')
    for i in range(4*NT): a(f'v_mov_b32 v{L0+i}, 0\nv_mov_b32 v{NM+i}, 0')
    a('s_mov_b32 s25, 0\ns_mov_b32 s26, 1\ns_mov_b32 s72, 0xff800000')
    a(f'LOOP_{tag}:')
    if kvload: a('s_waitcnt vmcnt(8)')
    a('s_waitcnt lgkmcnt(0)\ns_barrier')
    for n in range(8): a(f'ds_read_b128 {vr(F(n),4)}, v{KA+(n&3)} offset:{(n>>2)*4096}')
    if kvload:
        lab = a.lab()
        a(f's_cmp_lg_u32 s26, 0\ns_cbranch_scc1 {lab}')
        k1_dma_kv(a)
        a(f'{lab}:')
    def vread(t):
        for T in range(2): a(f'ds_read_b64_tr_b16 {vr(F(t)+2*T,2)}, v{VA+t} offset:{T*4096}')
    for n in range(8):
        kt, s = n >> 2, n & 3
        a(f's_waitcnt lgkmcnt({7-n+2*max(n-1,0) if n>0 else 7})')
        for qi in range(NT):
            c = NM + qi*4 if s == 0 else S(qi,kt)
            a(f'v_mfma_f32_16x16x32_bf16 {vr(S(qi,kt),4)}, {vr(F(n),4)}, {vr(Q(qi,s),4)}, {vr(c,4)}')
        if n >= 1: vread(n-1)
    a('''s_add_u32 s31, s31, 1
    s_cmp_eq_u32 s31, 3
    s_cselect_b32 s31, 0, s31
    s_mov_b32 s30, 32768
    s_cselect_b32 s30, 0xffff0000, s30''')
    for s in range(4): a(f'v_add_u32 v{KA+s}, s30, v{KA+s}')
    vals = [S(qi,0)+i for qi in range(NT) for i in range(4)] + [S(qi,1)+i for qi in range(NT) for i in range(4)]
    a(f'v_max3_f32 v{TM}, v{vals[0]}, v{vals[1]}, v{vals[2]}')
    k = 3
    while k + 1 < len(vals):
        a(f'v_max3_f32 v{TM}, v{TM}, v{vals[k]}, v{vals[k+1]}'); k += 2
    if k < len(vals): a(f'v_max_f32 v{TM}, v{TM}, v{vals[k]}')
    a(f'v_cmp_lt_f32 vcc, s64, v{TM}')
    vread(7)
    a(f's_cmp_lg_u32 s26, 0\ns_cbranch_scc1 SLOW_{tag}\ns_cbranch_vccnz SLOW_{tag}')
    a(f'BACK_{tag}:')
    for qi in range(NT):
        for i in range(8): a(f'v_exp_f32 v{S0+qi*8+i}, v{S0+qi*8+i}')
        for i in range(4): a(f'v_cvt_pk_bf16_f32 v{S0+qi*8+i}, v{S0+qi*8+2*i}, v{S0+qi*8+2*i+1}')
    for t in range(8):
        a(f's_waitcnt lgkmcnt({14-2*t})')
        for qi in range(NT):
            a(f'v_mfma_f32_16x16x32_bf16 {vr(O(t,qi),4)}, {vr(F(t),4)}, {vr(S(qi,0),4)}, {vr(O(t,qi),4)}')
        if t == 0:
            for qi in range(NT):
                a(f'v_mfma_f32_16x16x32_bf16 {vr(L0+qi*4,4)}, {vr(ONES,4)}, {vr(S(qi,0),4)}, {vr(L0+qi*4,4)}')
    for t in range(8): a(f'v_add_u32 v{VA+t}, s30, v{VA+t}')
    a(f'''s_mov_b32 s26, 0
    s_mov_b32 s72, 0
    s_add_u32 s25, s25, 1
    s_cmp_lt_u32 s25, 16
    s_cbranch_scc1 LOOP_{tag}''')
    a('s_barrier')
    if kvload: k1_dma_kv(a)
    SA = T0; PA = T0+1
    a(f'''v_and_b32 v{T0+2}, 15, v{LANE}
    v_lshlrev_b32 v{T0+2}, 2, v{T0+2}
    s_mul_i32 s60, s3, 384
    s_add_u32 s60, s60, {STG+49152}
    v_add_u32 v{SA}, s60, v{T0+2}
    s_mul_i32 s60, s36, 384
    s_add_u32 s60, s60, {STG+49152}
    v_add_u32 v{PA}, s60, v{T0+2}
    s_nop 7''')
    for qi in range(NT):
        a(f'ds_write_b32 v{SA}, v{NM+qi*4} offset:{qi*128}\nds_write_b32 v{SA}, v{L0+qi*4} offset:{qi*128+64}')
    a('s_waitcnt lgkmcnt(0)\ns_barrier')
    for qi in range(NT):
        a(f'ds_read_b32 v{S0+qi*8}, v{PA} offset:{qi*128}\nds_read_b32 v{S0+qi*8+1}, v{PA} offset:{qi*128+64}')
    a('s_waitcnt lgkmcnt(0)')
    for qi in range(NT):
        b = S0 + qi*8
        a(f'''v_min_f32 v{b+2}, v{b}, v{NM+qi*4}
        v_sub_f32 v{b+3}, v{b+2}, v{NM+qi*4}
        v_sub_f32 v{b+4}, v{b+2}, v{b}
        v_exp_f32 v{b+3}, v{b+3}
        v_exp_f32 v{b+4}, v{b+4}
        v_mul_f32 v{b+5}, v{b+3}, v{L0+qi*4}
        v_fma_f32 v{b+5}, v{b+4}, v{b+1}, v{b+5}
        v_rcp_f32 v{b+5}, v{b+5}
        v_mul_f32 v{b+6}, v{b+3}, v{b+5}''')
        for t in range(8):
            for i in range(4): a(f'v_mul_f32 v{O(t,qi)+i}, v{b+6}, v{O(t,qi)+i}')
    a(f'''s_mul_i32 s60, s3, 6144
    s_add_u32 s60, s60, {STG}
    v_add_u32 v{SA}, s60, v{L16}
    s_mul_i32 s60, s36, 6144
    s_add_u32 s60, s60, {STG}
    v_add_u32 v{PA}, s60, v{L16}''')
    lK1 = a.lab(); lE = a.lab()
    a(f's_cmp_lg_u32 s34, 0\ns_cbranch_scc1 {lK1}')
    for kg in range(2):
        if kg == 1: a(f'{lK1}:')
        keep = 4*kg; send = 4*(1-kg)
        for rho in range(2):
            for qi in range(NT):
                for tt in range(2): a(f'ds_write_b128 v{SA}, {vr(O(send+2*rho+tt,qi),4)} offset:{(qi*2+tt)*1024}')
            a('s_waitcnt lgkmcnt(0)\ns_barrier')
            for qi in range(NT):
                for tt in range(2): a(f'ds_read_b128 {vr(FR+(qi*2+tt)*4,4)}, v{PA} offset:{(qi*2+tt)*1024}')
            a('s_waitcnt lgkmcnt(0)\ns_barrier')
            for qi in range(NT):
                for tt in range(2):
                    for i in range(4):
                        r = O(keep+2*rho+tt,qi)+i
                        a(f'v_add_f32 v{r}, v{r}, v{FR+(qi*2+tt)*4+i}')
        a(f'''s_mul_i32 s60, s32, 9
        s_add_u32 s60, s60, s35
        s_lshl_b32 s60, s60, 7
        s_lshl_b32 s61, s33, 2
        s_add_u32 s60, s60, s61
        s_add_u32 s60, s60, {2*kg}
        s_lshl_b32 s60, s60, 10''')
        for qi in range(NT):
            for uu in range(2):
                t0, t1 = keep+2*uu, keep+2*uu+1
                d = FR + (qi*2+uu)*4
                a(f'''v_cvt_pk_bf16_f32 v{d}, v{O(t0,qi)}, v{O(t0,qi)+1}
                v_cvt_pk_bf16_f32 v{d+1}, v{O(t0,qi)+2}, v{O(t0,qi)+3}
                v_cvt_pk_bf16_f32 v{d+2}, v{O(t1,qi)}, v{O(t1,qi)+1}
                v_cvt_pk_bf16_f32 v{d+3}, v{O(t1,qi)+2}, v{O(t1,qi)+3}
                s_add_u32 s61, s60, {qi*131072+uu*1024}
                buffer_store_dwordx4 {vr(d,4)}, v{L16}, s[20:23], s61 offen''')
        if kg == 0: a(f's_branch {lE}')
    a(f'{lE}:')
    a(f'''s_add_u32 s24, s24, 1
    s_cmp_lt_u32 s24, 2
    s_cbranch_scc1 UNIT_{tag}
    s_waitcnt vmcnt(0)
    s_endpgm''')
    a(f'SLOW_{tag}:')
    a(f'v_xor_b32 v{T0}, 16, v{LANE}\nv_lshlrev_b32 v{T0}, 2, v{T0}\nv_xor_b32 v{T0+1}, 32, v{LANE}\nv_lshlrev_b32 v{T0+1}, 2, v{T0+1}')
    for qi in range(NT):
        b = S0 + qi*8; m = T0+2+qi
        a(f'''v_max3_f32 v{m}, v{b}, v{b+1}, v{b+2}
        v_max3_f32 v{m}, v{m}, v{b+3}, v{b+4}
        v_max3_f32 v{m}, v{m}, v{b+5}, v{b+6}
        v_max_f32 v{m}, v{m}, v{b+7}
        ds_bpermute_b32 v{TM}, v{T0}, v{m}
        s_waitcnt lgkmcnt(0)
        v_max_f32 v{m}, v{m}, v{TM}
        ds_bpermute_b32 v{TM}, v{T0+1}, v{m}
        s_waitcnt lgkmcnt(0)
        v_max_f32 v{m}, v{m}, v{TM}
        v_max_f32 v{m}, s72, v{m}''')
        for i in range(8): a(f'v_sub_f32 v{b+i}, v{b+i}, v{m}')
        for i in range(4): a(f'v_sub_f32 v{NM+qi*4+i}, v{NM+qi*4+i}, v{m}')
    a(f's_cmp_lg_u32 s26, 0\ns_cbranch_scc1 BACK_{tag}')
    for qi in range(NT):
        m = T0+2+qi
        a(f'v_sub_f32 v{m}, 0, v{m}\nv_exp_f32 v{m}, v{m}\ns_nop 0')
        for t in range(8):
            for i in range(4): a(f'v_mul_f32 v{O(t,qi)+i}, v{m}, v{O(t,qi)+i}')
        for i in range(4): a(f'v_mul_f32 v{L0+qi*4+i}, v{m}, v{L0+qi*4+i}')
    a(f's_nop 1\ns_branch BACK_{tag}')
class A2(Asm):
    n = 0
    def lab(s):
        A2.n += 1; return f'L{A2.n}'
def k1():
    a = A2()
    a(f'''s_cmp_ge_u32 s2, 256
    s_cbranch_scc1 K1_EXIT
    s_load_dwordx8 s[76:83], s[0:1], 0
    s_load_dwordx8 s[84:91], s[0:1], 40
    s_load_dwordx2 s[56:57], s[0:1], 96
    v_and_b32 v{LANE}, 63, v0
    v_lshrrev_b32 v1, 6, v0
    v_lshlrev_b32 v{L16}, 4, v{LANE}
    v_readfirstlane_b32 s3, v1
    s_and_b32 s33, s2, 7
    s_lshl_b32 s33, s33, 2
    s_bfe_u32 s60, s2, 0x20003
    s_add_u32 s33, s33, s60
    s_lshr_b32 s32, s2, 5
    s_lshl_b32 s60, s3, 2
    s_lshr_b32 s35, 0x75375300, s60
    s_and_b32 s35, s35, 15
    s_lshr_b32 s36, 0x43276501, s60
    s_and_b32 s36, s36, 15
    s_lshr_b32 s34, 0xE2, s3
    s_and_b32 s34, s34, 1
    s_mov_b32 s64, 0x41000000
    s_mov_b32 s65, 0x3e0293ee
    s_mov_b32 s24, 0
    s_mov_b32 s27, 0
    s_mov_b32 s28, 0
    s_mov_b32 s29, 0
    s_mov_b32 s31, 0
    s_lshl_b32 s60, s32, 5
    s_add_u32 s60, s60, s33
    s_lshl_b32 s60, s60, 18
    s_mul_i32 s61, s32, 147456
    s_lshl_b32 s62, s33, 8
    s_waitcnt lgkmcnt(0)
    s_add_u32 s40, s78, s60
    s_addc_u32 s41, s79, 0
    s_add_u32 s44, s80, s60
    s_addc_u32 s45, s81, 0
    s_add_u32 s42, s86, s60
    s_addc_u32 s43, s87, 0
    s_add_u32 s46, s88, s60
    s_addc_u32 s47, s89, 0
    s_add_u32 s48, s76, s61
    s_addc_u32 s49, s77, 0
    s_add_u32 s50, s84, s61
    s_addc_u32 s51, s85, 0
    s_add_u32 s52, s82, s62
    s_addc_u32 s53, s83, 0
    s_add_u32 s54, s90, s62
    s_addc_u32 s55, s91, 0
    s_mov_b32 s4, s40
    s_mov_b32 s5, s41
    s_mov_b32 s8, s44
    s_mov_b32 s9, s45''')
    srd(a, 4, 262144); srd(a, 8, 262144); srd(a, 12, 147456); srd(a, 16, 4194304); srd(a, 20, 9437184)
    a(f'''v_and_b32 v1, 15, v{LANE}
    v_lshrrev_b32 v2, 4, v{LANE}
    v_and_b32 v3, 7, v1
    v_lshlrev_b32 v3, 1, v3
    s_lshl_b32 s60, s34, 13
    v_lshlrev_b32 v4, 8, v1
    v_add_u32 v4, s60, v4''')
    for s in range(4):
        a(f'v_add_u32 v5, {4*s}, v2\nv_xor_b32 v5, v5, v3\nv_lshl_add_u32 v{KA+s}, v5, 4, v4')
    a(f'''v_lshrrev_b32 v1, 2, v{LANE}
    v_and_b32 v3, 7, v1
    v_lshlrev_b32 v3, 1, v3
    v_bfe_u32 v5, v{LANE}, 1, 1
    v_xor_b32 v5, v5, v3
    v_lshlrev_b32 v5, 4, v5
    v_and_b32 v6, 1, v{LANE}
    v_lshl_add_u32 v5, v6, 3, v5
    v_lshl_add_u32 v5, v1, 8, v5
    s_add_u32 s60, s60, 16384
    v_add_u32 v5, s60, v5''')
    for t in range(8): a(f'v_xor_b32 v{VA+t}, {32*t}, v5')
    a(f'''v_bfe_u32 v1, v{LANE}, 2, 2
    v_lshl_add_u32 v3, v2, 3, v1
    v_lshlrev_b32 v3, 8, v3
    s_and_b32 s60, s3, 3
    s_lshl_b32 s60, s60, 2
    v_and_b32 v5, 3, v{LANE}
    v_add_u32 v5, s60, v5
    v_lshlrev_b32 v1, 2, v1
    v_xor_b32 v5, v5, v1
    v_lshl_add_u32 v3, v5, 4, v3
    v_add_u32 v{AQ}, {STG}, v3''')
    for i in range(4): a(f'v_mov_b32 v{ONES+i}, 0x3f803f80')
    if int(OPT['prio']):
        a('s_cmp_ge_u32 s3, 4\ns_cbranch_scc0 K1_NOPRIO\ns_setprio 1\nK1_NOPRIO:')
    a('''s_cmp_lt_u32 s3, 2
    s_cbranch_scc1 K1_A
    s_cmp_lt_u32 s3, 4
    s_cbranch_scc1 K1_B
    s_branch K1_C''')
    k1_variant(a, 3, True, 'A'); k1_variant(a, 2, True, 'B'); k1_variant(a, 2, False, 'C')
    a('K1_EXIT:\ns_endpgm')
    return a.text()
from gen2 import k2
def desc(name, vg, sg=102):
    return f'''.amdhsa_kernel {name}
  .amdhsa_next_free_vgpr {vg}
  .amdhsa_next_free_sgpr {sg}
  .amdhsa_accum_offset {(vg+3)//4*4}
  .amdhsa_group_segment_fixed_size 0
  .amdhsa_kernarg_size 104
  .amdhsa_user_sgpr_count 2
  .amdhsa_user_sgpr_kernarg_segment_ptr 1
  .amdhsa_system_sgpr_workgroup_id_x 1
.end_amdhsa_kernel
'''
hdr = open('cdna_kernels/' + NAME + '.s.ref').read().split('; Override')[0]
k2text, k2lds, k2grid, k2vg = k2(A2, OPT)
out = hdr + f'''; @launch kernel=mha_attn_kernel grid=(256,1,1) block=(512,1,1) lds={LDS1}
; @launch kernel=mha_oproj_kernel grid=({k2grid},1,1) block=(512,1,1) lds={k2lds}
.amdgcn_target "amdgcn-amd-amdhsa--gfx950"
.text
.globl mha_attn_kernel
.p2align 8
.type mha_attn_kernel,@function
mha_attn_kernel:
{k1()}
.globl mha_oproj_kernel
.p2align 8
.type mha_oproj_kernel,@function
mha_oproj_kernel:
{k2text}
.section .rodata,"a"
.p2align 6
{desc('mha_attn_kernel', 256)}
.p2align 6
{desc('mha_oproj_kernel', k2vg)}
'''
open(sys.argv[1], 'w').write(out)
```

```python
import sys
from asmlib import *
NAME = 'concat_heads__mha_block_cached__mha_block_cached__near_ridge'
STG = 98304; CH = 17408; LDS1 = STG + 3*CH
OPT = dict(nt='', prio=0, stamp=0, nold=0, rot=0, hmap=0, stag=1)
for a in sys.argv[2:]:
    k, v = a.split('='); OPT[k] = v
NTF = ' nt' if OPT['nt'] == '1' else ''
L0=96; Q0=108; S0=156; NM=180; FR=192; KA=224; VA=228; ONES=236; VE=240; VO=241; L16=242; AQ=243; LANE=244; T0=245; TM=252
STAMP_N = [0]
def stamp(a, i):
    if int(OPT['stamp']):
        a(f's_memtime s[74:75]\ns_waitcnt lgkmcnt(0)\ns_mov_b32 s{92+i}, s74')
def stamp_out(a):
    if int(OPT['stamp']):
        a("""s_memrealtime s[74:75]
        s_waitcnt lgkmcnt(0)
        s_mov_b32 s101, s74
        s_add_u32 s76, s56, 0x4000000
        s_addc_u32 s77, s57, 0
        s_mov_b32 s78, 0x100000
        s_mov_b32 s79, 0x20000
        s_lshl_b32 s60, s2, 3
        s_add_u32 s60, s60, s3
        s_lshl_b32 s60, s60, 6
        v_mov_b32 v1, 0""")
        for i in range(10):
            a(f'v_mov_b32 v2, s{92+i}\nbuffer_store_dword v2, v1, s[76:79], s60 offen offset:{i*4}')
def srd(a, base, nrec):
    a(f's_mov_b32 s{base+2}, {nrec}\ns_mov_b32 s{base+3}, 0x20000')
def k1_dma_pieces():
    P = []
    P.append('s_lshl_b32 s60, s39, 12\ns_add_u32 s61, s28, s60\ns_add_u32 s62, s27, s60\ns_mov_b32 m0, s61\n' +
             f'buffer_load_dwordx4 v{VE}, s[4:7], s62 offen offset:0{NTF} lds')
    for j in range(1, 4):
        P.append(f'buffer_load_dwordx4 v{VE if j%2==0 else VO}, s[4:7], s62 offen offset:{j*1024}{NTF} lds')
    P.append(f's_add_u32 m0, s61, 16384\nbuffer_load_dwordx4 v{VE}, s[8:11], s62 offen offset:0{NTF} lds')
    for j in range(1, 4):
        P.append(f'buffer_load_dwordx4 v{VE if j%2==0 else VO}, s[8:11], s62 offen offset:{j*1024}{NTF} lds')
    return P
def k1_dma_advance(a):
    lab = a.lab()
    nr = 0 if int(OPT['nold']) else 262144
    a(f'''s_add_u32 s28, s28, 32768
    s_cmp_eq_u32 s28, 98304
    s_cselect_b32 s28, 0, s28
    s_add_u32 s27, s27, 16384
    s_cmp_lg_u32 s27, 262144
    s_cbranch_scc1 {lab}
    s_mov_b32 s27, 0
    s_mov_b32 s4, s42
    s_mov_b32 s5, s43
    s_mov_b32 s8, s46
    s_mov_b32 s9, s47
    s_add_u32 s29, s29, 1
    s_cmp_eq_u32 s29, 1
    s_cselect_b32 s6, {nr}, 0
    s_cselect_b32 s10, {nr}, 0
    {lab}:''')
def k1_dma_kv(a):
    for p in k1_dma_pieces(): a(p)
    k1_dma_advance(a)
def k1_dma_kv_old(a):
    a('s_lshl_b32 s60, s39, 12\ns_add_u32 s61, s28, s60\ns_add_u32 s60, s27, s60\ns_mov_b32 m0, s61')
    for j in range(4):
        a(f'buffer_load_dwordx4 v{VE if j%2==0 else VO}, s[4:7], s60 offen offset:{j*1024}{NTF} lds')
    a('s_add_u32 m0, s61, 16384')
    for j in range(4):
        a(f'buffer_load_dwordx4 v{VE if j%2==0 else VO}, s[8:11], s60 offen offset:{j*1024}{NTF} lds')
    lab = a.lab()
    a(f'''s_add_u32 s28, s28, 32768
    s_cmp_eq_u32 s28, 98304
    s_cselect_b32 s28, 0, s28
    s_add_u32 s27, s27, 16384
    s_cmp_lg_u32 s27, 262144
    s_cbranch_scc1 {lab}
    s_mov_b32 s27, 0
    s_mov_b32 s4, s42
    s_mov_b32 s5, s43
    s_mov_b32 s8, s46
    s_mov_b32 s9, s47
    s_add_u32 s29, s29, 1
    s_cmp_eq_u32 s29, 1
    s_cselect_b32 s6, {0 if int(OPT['nold']) else 262144}, 0
    s_cselect_b32 s10, {0 if int(OPT['nold']) else 262144}, 0
    {lab}:''')
def k1_dma_proj(a0, c):
    P = []
    class _A:
        def __call__(s, t): P.append(t)
    a = _A()
    k1_dma_proj_(a, c)
    P = [P[0] + '\n' + P[1]] + P[2:]
    if a0 is None: return P
    for p in P: a0(p)
def k1_dma_proj_(a, c):
    base = STG + (c % 3) * CH
    a(f's_add_u32 s37, s73, {c}\ns_and_b32 s37, s37, 15\ns_lshl_b32 s38, s37, 18\ns_lshl_b32 s37, s37, 6')
    a(f's_add_u32 m0, s67, {base}\ns_add_u32 s60, s66, s37\nbuffer_load_dwordx4 v{VE}, s[12:15], s60 offen lds')
    a(f's_add_u32 m0, s67, {base+4096}\ns_add_u32 s60, s60, {4*16384}\nbuffer_load_dwordx4 v{VE}, s[12:15], s60 offen lds')
    a(f's_mov_b32 m0, {base+8192}\ns_add_u32 s60, s37, {8*16384}\ns_mov_b64 exec, s[68:69]\nbuffer_load_dwordx4 v{VE}, s[12:15], s60 offen lds\ns_mov_b64 exec, -1')
    a(f's_add_u32 m0, s71, {base+9216}\ns_add_u32 s60, s70, s38\nbuffer_load_dwordx4 v{VO}, s[16:19], s60 offen lds')
    a(f's_add_u32 m0, s71, {base+9216+1024}\ns_add_u32 s60, s60, {4*8192}\nbuffer_load_dwordx4 v{VO}, s[16:19], s60 offen lds')
def k1_qproj(a, NQ, kvload):
    q0 = 0 if NQ == 5 else 5
    ACC = lambda T, qi: (T*5+qi)*4
    AF = lambda st, T: 40 + st*8 + T*4
    BF = lambda st, qi: 56 + st*20 + qi*4
    for i in range(40): a(f'v_mov_b32 v{i}, 0')
    def reads(c):
        st = c & 1; base = (c % 3) * CH
        for T in range(2):
            for H in range(2):
                a(f'ds_read_b64_tr_b16 {vr(AF(st,T)+2*H,2)}, v{AQ} offset:{base+9216+H*1024+T*8}')
        for qi in range(NQ):
            a(f'ds_read_b128 {vr(BF(st,qi),4)}, v{T0} offset:{base+(q0+qi)*1024}')
    a(f'''v_and_b32 v{T0}, 15, v{LANE}
    v_lshrrev_b32 v{T0+1}, 2, v{T0}
    v_sub_u32 v{T0+1}, 0, v{T0+1}
    v_lshrrev_b32 v{T0+2}, 4, v{LANE}
    v_xor_b32 v{T0+1}, v{T0+1}, v{T0+2}
    v_and_b32 v{T0+1}, 3, v{T0+1}
    v_lshlrev_b32 v{T0+1}, 4, v{T0+1}
    v_lshl_add_u32 v{T0}, v{T0}, 6, v{T0+1}
    v_add_u32 v{T0}, {STG}, v{T0}''')
    if not kvload:
        for c in range(3): k1_dma_proj(a, c)
        a('s_waitcnt vmcnt(10)')
    a('s_barrier')
    reads(0)
    for c in range(16):
        if c < 15:
            if not kvload: a(f's_waitcnt vmcnt({5 if c < 14 else 0})')
            a('s_waitcnt lgkmcnt(0)\ns_barrier')
            reads(c + 1)
        else:
            a('s_waitcnt lgkmcnt(0)')
        st = c & 1
        P = k1_dma_proj(None, c + 3) if (not kvload and c + 3 < 16) else []
        for qi in range(NQ):
            for T in range(2):
                a(f'v_mfma_f32_16x16x32_bf16 {vr(ACC(T,qi),4)}, {vr(AF(st,T),4)}, {vr(BF(st,qi),4)}, {vr(ACC(T,qi),4)}')
            if P: a(P.pop(0))
        for p in P: a(p)
    a('s_barrier')
    a(f's_and_b32 s60, s3, 3\ns_lshl_b32 s60, s60, 10\ns_add_u32 s60, s60, {STG}\nv_add_u32 v{T0}, s60, v{L16}')
    for qi in range(NQ):
        for T in range(2):
            for i in range(4): a(f'v_mul_f32 v{ACC(T,qi)+i}, s65, v{ACC(T,qi)+i}')
        d = 40 + qi*4
        a(f'''v_cvt_pk_bf16_f32 v{d}, v{ACC(0,qi)}, v{ACC(0,qi)+1}
        v_cvt_pk_bf16_f32 v{d+1}, v{ACC(0,qi)+2}, v{ACC(0,qi)+3}
        v_cvt_pk_bf16_f32 v{d+2}, v{ACC(1,qi)}, v{ACC(1,qi)+1}
        v_cvt_pk_bf16_f32 v{d+3}, v{ACC(1,qi)+2}, v{ACC(1,qi)+3}
        ds_write_b128 v{T0}, {vr(d,4)} offset:{(q0+qi)*4096}''')
    a('s_waitcnt lgkmcnt(0)\ns_barrier')
def k1_variant(a, NT, kvload, NQ, stag, tag):
    O = lambda t, qi: (t*NT+qi)*4
    Q = lambda qi, s: Q0 + (qi*4+s)*4
    S = lambda qi, kt: S0 + qi*8 + kt*4
    F = lambda n: FR + n*4
    a(f'K1_{tag}:')
    if kvload:
        a(f'''v_lshrrev_b32 v{T0}, 4, v{LANE}
        v_and_b32 v{T0+1}, 15, v{LANE}
        v_lshlrev_b32 v{T0+2}, 1, v{T0}
        v_xor_b32 v{T0+3}, v{T0+1}, v{T0+2}
        v_lshlrev_b32 v{T0+3}, 4, v{T0+3}
        v_lshl_add_u32 v{VE}, v{T0}, 8, v{T0+3}
        v_xor_b32 v{VO}, 128, v{VE}''')
        for _ in range(3): k1_dma_kv(a)
    else:
        a(f'''v_lshrrev_b32 v{T0}, 4, v{LANE}
        v_and_b32 v{T0+1}, 15, v{LANE}
        v_lshrrev_b32 v{T0+2}, 2, v{LANE}
        v_sub_u32 v{T0+3}, 0, v{T0}
        v_xor_b32 v{T0+3}, v{T0+3}, v{LANE}
        v_and_b32 v{T0+3}, 3, v{T0+3}
        v_lshlrev_b32 v{T0+3}, 4, v{T0+3}
        v_lshl_add_u32 v{VE}, v{T0+2}, 10, v{T0+3}
        v_lshlrev_b32 v{T0+2}, 2, v{T0}
        v_xor_b32 v{T0+3}, v{T0+1}, v{T0+2}
        v_lshlrev_b32 v{T0+3}, 4, v{T0+3}
        v_lshl_add_u32 v{VO}, v{T0}, 13, v{T0+3}
        s_mov_b32 s60, s39
        s_lshl_b32 s66, s60, 14
        s_lshl_b32 s67, s60, 10
        s_lshl_b32 s70, s60, 16
        s_lshl_b32 s71, s60, 11
        s_lshl_b32 s61, s60, 4
        s_mov_b64 s[68:69], 0xffff
        s_lshl_b64 s[68:69], s[68:69], s61''')
    a(f'UNIT_{tag}:')
    a('''s_cmp_eq_u32 s24, 0
    s_cselect_b32 s12, s48, s50
    s_cselect_b32 s13, s49, s51
    s_cselect_b32 s16, s52, s54
    s_cselect_b32 s17, s53, s55
    s_mul_i32 s60, s24, 9437184
    s_add_u32 s20, s56, s60
    s_addc_u32 s21, s57, 0''')
    k1_qproj(a, NQ, kvload)
    if int(OPT['stamp']):
        a(f's_memtime s[74:75]\ns_waitcnt lgkmcnt(0)\ns_cmp_eq_u32 s24, 0\ns_cselect_b32 s94, s74, s94\ns_cselect_b32 s97, s97, s74')
    a(f's_lshl_b32 s60, s35, 12\ns_add_u32 s60, s60, {STG}\nv_add_u32 v{T0}, s60, v{L16}')
    for qi in range(NT):
        for s in range(4): a(f'ds_read_b128 {vr(Q(qi,s),4)}, v{T0} offset:{(qi*4+s)*1024}')
    for i in range(32*NT): a(f'v_mov_b32 v{i}, 0')
    for i in range(4*NT): a(f'v_mov_b32 v{L0+i}, 0\nv_mov_b32 v{NM+i}, 0')
    def vread(t):
        for T in range(2): a(f'ds_read_b64_tr_b16 {vr(F(t)+2*T,2)}, v{VA+t} offset:{T*4096}')
    def kread(n): a(f'ds_read_b128 {vr(F(n),4)}, v{KA+(n&3)} offset:{(n>>2)*4096}')
    def pv(dma, kreads):
        for t in range(8):
            if not stag: a(f's_waitcnt lgkmcnt({14-2*t})')
            for qi in range(NT):
                a(f'v_mfma_f32_16x16x32_bf16 {vr(O(t,qi),4)}, {vr(F(t),4)}, {vr(S(qi,0),4)}, {vr(O(t,qi),4)}')
            if t == 0:
                for qi in range(NT):
                    a(f'v_mfma_f32_16x16x32_bf16 {vr(L0+qi*4,4)}, {vr(ONES,4)}, {vr(S(qi,0),4)}, {vr(L0+qi*4,4)}')
            if kreads: kread(t)
            if dma: a(dma[t])
    def body(first):
        dma = k1_dma_pieces() if (kvload and not first) else None
        if kvload: a('s_waitcnt vmcnt(8)')
        a('s_waitcnt lgkmcnt(0)\ns_barrier')
        if stag and not first:
            pv(dma, True)
        else:
            for n in range(8): kread(n)
        for n in range(8):
            kt, s = n >> 2, n & 3
            a(f's_waitcnt lgkmcnt({7-n+2*max(n-1,0) if n>0 else 7})')
            for qi in range(NT):
                c = NM + qi*4 if s == 0 else S(qi,kt)
                a(f'v_mfma_f32_16x16x32_bf16 {vr(S(qi,kt),4)}, {vr(F(n),4)}, {vr(Q(qi,s),4)}, {vr(c,4)}')
            if n >= 1: vread(n-1)
            if dma and not stag: a(dma[n])
        if dma: k1_dma_advance(a)
        a("""s_add_u32 s31, s31, 1
        s_cmp_eq_u32 s31, 3
        s_cselect_b32 s31, 0, s31
        s_mov_b32 s30, 32768
        s_cselect_b32 s30, 0xffff0000, s30""")
        for s in range(4): a(f'v_add_u32 v{KA+s}, s30, v{KA+s}')
        if first:
            vread(7)
            slow(True)
        else:
            vals = [S(qi,0)+i for qi in range(NT) for i in range(4)] + [S(qi,1)+i for qi in range(NT) for i in range(4)]
            a(f'v_max3_f32 v{TM}, v{vals[0]}, v{vals[1]}, v{vals[2]}')
            k = 3
            while k + 1 < len(vals):
                a(f'v_max3_f32 v{TM}, v{TM}, v{vals[k]}, v{vals[k+1]}'); k += 2
            if k < len(vals): a(f'v_max_f32 v{TM}, v{TM}, v{vals[k]}')
            a(f'v_cmp_lt_f32 vcc, s64, v{TM}')
            vread(7)
            a(f's_cbranch_vccnz SLOW_{tag}\nBACK_{tag}:')
        for qi in range(NT):
            for i in range(8): a(f'v_exp_f32 v{S0+qi*8+i}, v{S0+qi*8+i}')
            for i in range(4): a(f'v_cvt_pk_bf16_f32 v{S0+qi*8+i}, v{S0+qi*8+2*i}, v{S0+qi*8+2*i+1}')
        if not stag: pv(None, False)
        for t in range(8): a(f'v_add_u32 v{VA+t}, s30, v{VA+t}')
    def slow(first):
        a(f'v_xor_b32 v{T0}, 16, v{LANE}\nv_lshlrev_b32 v{T0}, 2, v{T0}\nv_xor_b32 v{T0+1}, 32, v{LANE}\nv_lshlrev_b32 v{T0+1}, 2, v{T0+1}')
        for qi in range(NT):
            b = S0 + qi*8; m = T0+2+qi
            a(f"""v_max3_f32 v{m}, v{b}, v{b+1}, v{b+2}
            v_max3_f32 v{m}, v{m}, v{b+3}, v{b+4}
            v_max3_f32 v{m}, v{m}, v{b+5}, v{b+6}
            v_max_f32 v{m}, v{m}, v{b+7}
            ds_bpermute_b32 v{TM}, v{T0}, v{m}
            s_waitcnt lgkmcnt(0)
            v_max_f32 v{m}, v{m}, v{TM}
            ds_bpermute_b32 v{TM}, v{T0+1}, v{m}
            s_waitcnt lgkmcnt(0)
            v_max_f32 v{m}, v{m}, v{TM}""")
            if not first: a(f'v_max_f32 v{m}, 0, v{m}')
            for i in range(8): a(f'v_sub_f32 v{b+i}, v{b+i}, v{m}')
            for i in range(4): a(f'v_sub_f32 v{NM+qi*4+i}, v{NM+qi*4+i}, v{m}')
        if first: return
        for qi in range(NT):
            m = T0+2+qi
            a(f'v_sub_f32 v{m}, 0, v{m}\nv_exp_f32 v{m}, v{m}\ns_nop 0')
            for t in range(8):
                for i in range(4): a(f'v_mul_f32 v{O(t,qi)+i}, v{m}, v{O(t,qi)+i}')
            for i in range(4): a(f'v_mul_f32 v{L0+qi*4+i}, v{m}, v{L0+qi*4+i}')
        a(f's_nop 1\ns_branch BACK_{tag}')
    body(True)
    a(f's_mov_b32 s25, 1\nLOOP_{tag}:')
    body(False)
    a(f"""s_add_u32 s25, s25, 1
    s_cmp_lt_u32 s25, 16
    s_cbranch_scc1 LOOP_{tag}""")
    if stag:
        a('s_waitcnt lgkmcnt(0)')
        pv(None, False)
    if int(OPT['stamp']):
        a(f's_memtime s[74:75]\ns_waitcnt lgkmcnt(0)\ns_cmp_eq_u32 s24, 0\ns_cselect_b32 s95, s74, s95\ns_cselect_b32 s98, s98, s74')
    a('s_barrier')
    if kvload: k1_dma_kv(a)
    SA = T0; PA = T0+1
    a(f'''v_and_b32 v{T0+2}, 15, v{LANE}
    v_lshlrev_b32 v{T0+2}, 2, v{T0+2}
    s_mul_i32 s60, s3, 384
    s_add_u32 s60, s60, {STG+49152}
    v_add_u32 v{SA}, s60, v{T0+2}
    s_mul_i32 s60, s36, 384
    s_add_u32 s60, s60, {STG+49152}
    v_add_u32 v{PA}, s60, v{T0+2}
    s_nop 7''')
    for qi in range(NT):
        a(f'ds_write_b32 v{SA}, v{NM+qi*4} offset:{qi*128}\nds_write_b32 v{SA}, v{L0+qi*4} offset:{qi*128+64}')
    a('s_waitcnt lgkmcnt(0)\ns_barrier')
    for qi in range(NT):
        a(f'ds_read_b32 v{S0+qi*8}, v{PA} offset:{qi*128}\nds_read_b32 v{S0+qi*8+1}, v{PA} offset:{qi*128+64}')
    a('s_waitcnt lgkmcnt(0)')
    for qi in range(NT):
        b = S0 + qi*8
        a(f'''v_min_f32 v{b+2}, v{b}, v{NM+qi*4}
        v_sub_f32 v{b+3}, v{b+2}, v{NM+qi*4}
        v_sub_f32 v{b+4}, v{b+2}, v{b}
        v_exp_f32 v{b+3}, v{b+3}
        v_exp_f32 v{b+4}, v{b+4}
        v_mul_f32 v{b+5}, v{b+3}, v{L0+qi*4}
        v_fma_f32 v{b+5}, v{b+4}, v{b+1}, v{b+5}
        v_rcp_f32 v{b+5}, v{b+5}
        v_mul_f32 v{b+6}, v{b+3}, v{b+5}''')
        for t in range(8):
            for i in range(4): a(f'v_mul_f32 v{O(t,qi)+i}, v{b+6}, v{O(t,qi)+i}')
    a(f'''s_mul_i32 s60, s3, 6144
    s_add_u32 s60, s60, {STG}
    v_add_u32 v{SA}, s60, v{L16}
    s_mul_i32 s60, s36, 6144
    s_add_u32 s60, s60, {STG}
    v_add_u32 v{PA}, s60, v{L16}''')
    lK1 = a.lab(); lE = a.lab()
    a(f's_cmp_lg_u32 s34, 0\ns_cbranch_scc1 {lK1}')
    for kg in range(2):
        if kg == 1: a(f'{lK1}:')
        keep = 4*kg; send = 4*(1-kg)
        for rho in range(2):
            for qi in range(NT):
                for tt in range(2): a(f'ds_write_b128 v{SA}, {vr(O(send+2*rho+tt,qi),4)} offset:{(qi*2+tt)*1024}')
            a('s_waitcnt lgkmcnt(0)\ns_barrier')
            for qi in range(NT):
                for tt in range(2): a(f'ds_read_b128 {vr(FR+(qi*2+tt)*4,4)}, v{PA} offset:{(qi*2+tt)*1024}')
            a('s_waitcnt lgkmcnt(0)\ns_barrier')
            for qi in range(NT):
                for tt in range(2):
                    for i in range(4):
                        r = O(keep+2*rho+tt,qi)+i
                        a(f'v_add_f32 v{r}, v{r}, v{FR+(qi*2+tt)*4+i}')
        a(f'''s_mul_i32 s60, s32, 9
        s_add_u32 s60, s60, s35
        s_lshl_b32 s60, s60, 7
        s_lshl_b32 s61, s33, 2
        s_add_u32 s60, s60, s61
        s_add_u32 s60, s60, {2*kg}
        s_lshl_b32 s60, s60, 10''')
        for qi in range(NT):
            for uu in range(2):
                t0, t1 = keep+2*uu, keep+2*uu+1
                d = FR + (qi*2+uu)*4
                a(f'''v_cvt_pk_bf16_f32 v{d}, v{O(t0,qi)}, v{O(t0,qi)+1}
                v_cvt_pk_bf16_f32 v{d+1}, v{O(t0,qi)+2}, v{O(t0,qi)+3}
                v_cvt_pk_bf16_f32 v{d+2}, v{O(t1,qi)}, v{O(t1,qi)+1}
                v_cvt_pk_bf16_f32 v{d+3}, v{O(t1,qi)+2}, v{O(t1,qi)+3}
                s_add_u32 s61, s60, {qi*131072+uu*1024}
                buffer_store_dwordx4 {vr(d,4)}, v{L16}, s[20:23], s61 offen''')
        if kg == 0: a(f's_branch {lE}')
    a(f'{lE}:')
    if int(OPT['stamp']):
        a(f's_memtime s[74:75]\ns_waitcnt lgkmcnt(0)\ns_cmp_eq_u32 s24, 0\ns_cselect_b32 s96, s74, s96\ns_cselect_b32 s99, s99, s74')
    a(f'''s_add_u32 s24, s24, 1
    s_cmp_lt_u32 s24, 2
    s_cbranch_scc1 UNIT_{tag}
    s_waitcnt vmcnt(0)''')
    stamp_out(a)
    a('s_waitcnt vmcnt(0)\ns_endpgm')
    a(f'SLOW_{tag}:')
    slow(False)
class A2(Asm):
    n = 0
    def lab(s):
        A2.n += 1; return f'L{A2.n}'
def k1():
    a = A2()
    if int(OPT['hmap']) == 0:
        HMAP = 's_and_b32 s33, s2, 7\ns_lshl_b32 s33, s33, 2\ns_bfe_u32 s60, s2, 0x20003\ns_add_u32 s33, s33, s60\ns_lshr_b32 s32, s2, 5'
    else:
        HMAP = 's_and_b32 s33, s2, 3\ns_lshl_b32 s33, s33, 3\ns_bfe_u32 s60, s2, 0x30003\ns_add_u32 s33, s33, s60\ns_bfe_u32 s32, s2, 0x10002\ns_lshl_b32 s32, s32, 2\ns_lshr_b32 s60, s2, 6\ns_add_u32 s32, s32, s60'
    ROT = 's_mov_b32 s73, 0' if not int(OPT['rot']) else 's_lshr_b32 s73, s2, 3\ns_and_b32 s73, s73, 15'
    a(f'''s_cmp_ge_u32 s2, 256
    s_cbranch_scc1 K1_EXIT
    s_load_dwordx8 s[76:83], s[0:1], 0
    s_load_dwordx8 s[84:91], s[0:1], 40
    s_load_dwordx2 s[56:57], s[0:1], 96
    v_and_b32 v{LANE}, 63, v0
    v_lshrrev_b32 v1, 6, v0
    v_lshlrev_b32 v{L16}, 4, v{LANE}
    v_readfirstlane_b32 s3, v1
    {HMAP}
    s_lshl_b32 s60, s3, 2
    s_lshr_b32 s35, 0x75375300, s60
    s_and_b32 s35, s35, 15
    s_lshr_b32 s36, 0x43276501, s60
    s_and_b32 s36, s36, 15
    s_lshr_b32 s34, 0xE2, s3
    s_and_b32 s34, s34, 1
    s_mov_b32 s64, 0x41000000
    s_mov_b32 s65, 0x3e0293ee
    s_mov_b32 s24, 0
    {ROT}
    s_mov_b32 s27, 0
    s_mov_b32 s28, 0
    s_mov_b32 s29, 0
    s_mov_b32 s31, 0
    s_lshl_b32 s60, s32, 5
    s_add_u32 s60, s60, s33
    s_lshl_b32 s60, s60, 18
    s_mul_i32 s61, s32, 147456
    s_lshl_b32 s62, s33, 8
    s_waitcnt lgkmcnt(0)
    s_add_u32 s40, s78, s60
    s_addc_u32 s41, s79, 0
    s_add_u32 s44, s80, s60
    s_addc_u32 s45, s81, 0
    s_add_u32 s42, s86, s60
    s_addc_u32 s43, s87, 0
    s_add_u32 s46, s88, s60
    s_addc_u32 s47, s89, 0
    s_add_u32 s48, s76, s61
    s_addc_u32 s49, s77, 0
    s_add_u32 s50, s84, s61
    s_addc_u32 s51, s85, 0
    s_add_u32 s52, s82, s62
    s_addc_u32 s53, s83, 0
    s_add_u32 s54, s90, s62
    s_addc_u32 s55, s91, 0
    s_mov_b32 s4, s40
    s_mov_b32 s5, s41
    s_mov_b32 s8, s44
    s_mov_b32 s9, s45''')
    if int(OPT['stamp']):
        a('s_memrealtime s[74:75]\ns_waitcnt lgkmcnt(0)\ns_mov_b32 s92, s74')
        stamp(a, 1)
    nrKV = 0 if int(OPT['nold']) else 262144
    srd(a, 4, nrKV); srd(a, 8, nrKV); srd(a, 12, 147456); srd(a, 16, 4194304); srd(a, 20, 9437184)
    a(f'''v_and_b32 v1, 15, v{LANE}
    v_lshrrev_b32 v2, 4, v{LANE}
    v_and_b32 v3, 7, v1
    v_lshlrev_b32 v3, 1, v3
    s_lshl_b32 s60, s34, 13
    v_lshlrev_b32 v4, 8, v1
    v_add_u32 v4, s60, v4''')
    for s in range(4):
        a(f'v_add_u32 v5, {4*s}, v2\nv_xor_b32 v5, v5, v3\nv_lshl_add_u32 v{KA+s}, v5, 4, v4')
    a(f'''v_lshrrev_b32 v1, 2, v{LANE}
    v_and_b32 v3, 7, v1
    v_lshlrev_b32 v3, 1, v3
    v_bfe_u32 v5, v{LANE}, 1, 1
    v_xor_b32 v5, v5, v3
    v_lshlrev_b32 v5, 4, v5
    v_and_b32 v6, 1, v{LANE}
    v_lshl_add_u32 v5, v6, 3, v5
    v_lshl_add_u32 v5, v1, 8, v5
    s_add_u32 s60, s60, 16384
    v_add_u32 v5, s60, v5''')
    for t in range(8): a(f'v_xor_b32 v{VA+t}, {32*t}, v5')
    a(f'''v_bfe_u32 v1, v{LANE}, 2, 2
    v_lshl_add_u32 v3, v2, 3, v1
    v_lshlrev_b32 v3, 8, v3
    s_and_b32 s60, s3, 3
    s_lshl_b32 s60, s60, 2
    v_and_b32 v5, 3, v{LANE}
    v_add_u32 v5, s60, v5
    v_lshlrev_b32 v1, 2, v1
    v_xor_b32 v5, v5, v1
    v_lshl_add_u32 v3, v5, 4, v3
    v_add_u32 v{AQ}, {STG}, v3''')
    for i in range(4): a(f'v_mov_b32 v{ONES+i}, 0x3f803f80')
    if int(OPT['prio']):
        a('s_cmp_ge_u32 s3, 4\ns_cbranch_scc0 K1_NOPRIO\ns_setprio 1\nK1_NOPRIO:')
    a('''s_and_b32 s39, s3, 1
    s_lshr_b32 s60, s3, 2
    s_lshl_b32 s60, s60, 1
    s_add_u32 s39, s39, s60
    s_cmp_lt_u32 s3, 2
    s_cbranch_scc1 K1_A
    s_cmp_lt_u32 s3, 4
    s_cbranch_scc1 K1_J1
    s_cmp_lt_u32 s3, 6
    s_cbranch_scc1 K1_J2
    s_branch K1_D
    K1_J1:
    s_branch K1_B
    K1_J2:
    s_branch K1_C''')
    st = int(OPT['stag'])
    k1_variant(a, 3, False, 5, 0, 'A'); k1_variant(a, 2, True, 5, 0, 'B'); k1_variant(a, 2, False, 4, st, 'C'); k1_variant(a, 2, True, 4, st, 'D')
    a('K1_EXIT:\ns_endpgm')
    return a.text()
from gen2 import k2
def desc(name, vg, sg=102):
    return f'''.amdhsa_kernel {name}
  .amdhsa_next_free_vgpr {vg}
  .amdhsa_next_free_sgpr {sg}
  .amdhsa_accum_offset {(vg+3)//4*4}
  .amdhsa_group_segment_fixed_size 0
  .amdhsa_kernarg_size 104
  .amdhsa_user_sgpr_count 2
  .amdhsa_user_sgpr_kernarg_segment_ptr 1
  .amdhsa_system_sgpr_workgroup_id_x 1
.end_amdhsa_kernel
'''
hdr = open('cdna_kernels/' + NAME + '.s.ref').read().split('; Override')[0]
k2text, k2lds, k2grid, k2vg = k2(A2, OPT)
out = hdr + f'''; @launch kernel=mha_attn_kernel grid=(256,1,1) block=(512,1,1) lds={LDS1}
; @launch kernel=mha_oproj_kernel grid=({k2grid},1,1) block=(512,1,1) lds={k2lds}
.amdgcn_target "amdgcn-amd-amdhsa--gfx950"
.text
.globl mha_attn_kernel
.p2align 8
.type mha_attn_kernel,@function
mha_attn_kernel:
{k1()}
.globl mha_oproj_kernel
.p2align 8
.type mha_oproj_kernel,@function
mha_oproj_kernel:
{k2text}
.section .rodata,"a"
.p2align 6
{desc('mha_attn_kernel', 256)}
.p2align 6
{desc('mha_oproj_kernel', k2vg)}
'''
open(sys.argv[1], 'w').write(out)
```

```python
import sys
from asmlib import *
NAME = 'concat_heads__mha_block_cached__mha_block_cached__near_ridge'
STG = 98304; CH = 17408; LDS1 = STG + 3*CH
OPT = dict(nt='', prio=0, stamp=0, nold=0, rot=0, hmap=0, stag=1, nox=0, nowq=0, touch=1)
for a in sys.argv[2:]:
    k, v = a.split('='); OPT[k] = v
NTF = ' nt' if OPT['nt'] == '1' else ''
L0=96; Q0=108; S0=156; NM=180; FR=192; KA=224; VA=228; ONES=236; VE=240; VO=241; L16=242; AQ=243; LANE=244; T0=245; TM=252
STAMP_N = [0]
def stamp(a, i):
    if int(OPT['stamp']):
        a(f's_memtime s[74:75]\ns_waitcnt lgkmcnt(0)\ns_mov_b32 s{92+i}, s74')
def stamp_out(a):
    if int(OPT['stamp']):
        a("""s_memrealtime s[74:75]
        s_waitcnt lgkmcnt(0)
        s_mov_b32 s101, s74
        s_add_u32 s76, s56, 0x4000000
        s_addc_u32 s77, s57, 0
        s_mov_b32 s78, 0x100000
        s_mov_b32 s79, 0x20000
        s_lshl_b32 s60, s2, 3
        s_add_u32 s60, s60, s3
        s_lshl_b32 s60, s60, 6
        v_mov_b32 v1, 0""")
        for i in range(10):
            a(f'v_mov_b32 v2, s{92+i}\nbuffer_store_dword v2, v1, s[76:79], s60 offen offset:{i*4}')
def srd(a, base, nrec):
    a(f's_mov_b32 s{base+2}, {nrec}\ns_mov_b32 s{base+3}, 0x20000')
def k1_dma_pieces():
    P = []
    P.append('s_lshl_b32 s60, s39, 12\ns_add_u32 s61, s28, s60\ns_add_u32 s62, s27, s60\ns_mov_b32 m0, s61\n' +
             f'buffer_load_dwordx4 v{VE}, s[4:7], s62 offen offset:0{NTF} lds')
    for j in range(1, 4):
        P.append(f'buffer_load_dwordx4 v{VE if j%2==0 else VO}, s[4:7], s62 offen offset:{j*1024}{NTF} lds')
    P.append(f's_add_u32 m0, s61, 16384\nbuffer_load_dwordx4 v{VE}, s[8:11], s62 offen offset:0{NTF} lds')
    for j in range(1, 4):
        P.append(f'buffer_load_dwordx4 v{VE if j%2==0 else VO}, s[8:11], s62 offen offset:{j*1024}{NTF} lds')
    return P
def k1_dma_advance(a):
    lab = a.lab()
    nr = 0 if int(OPT['nold']) else 262144
    a(f'''s_add_u32 s28, s28, 32768
    s_cmp_eq_u32 s28, 98304
    s_cselect_b32 s28, 0, s28
    s_add_u32 s27, s27, 16384
    s_cmp_lg_u32 s27, 262144
    s_cbranch_scc1 {lab}
    s_mov_b32 s27, 0
    s_mov_b32 s4, s42
    s_mov_b32 s5, s43
    s_mov_b32 s8, s46
    s_mov_b32 s9, s47
    s_add_u32 s29, s29, 1
    s_cmp_eq_u32 s29, 1
    s_cselect_b32 s6, {nr}, 0
    s_cselect_b32 s10, {nr}, 0
    {lab}:''')
def k1_dma_kv(a):
    for p in k1_dma_pieces(): a(p)
    k1_dma_advance(a)
def k1_touch(a, br):
    if not int(OPT['touch']): return
    l1 = a.lab(); l2 = a.lab()
    xb = 76 + 8*br; wb = 82 + 8*br
    a(f'''s_lshr_b32 s60, s2, 3
    s_lshl_b32 s60, s60, 3
    s_add_u32 s60, s60, s3
    s_cmp_lt_u32 s60, 64
    s_cbranch_scc0 {l1}
    s_mov_b32 s12, s{wb}
    s_mov_b32 s13, s{wb+1}
    s_mov_b32 s14, 4194304
    s_lshl_b32 s60, s60, 16
    s_and_b32 s61, s2, 7
    s_lshl_b32 s61, s61, 10
    s_add_u32 s60, s60, s61
    v_lshrrev_b32 v253, 3, v{LANE}
    v_and_b32 v254, 7, v{LANE}
    v_lshlrev_b32 v254, 7, v254
    v_lshl_add_u32 v253, v253, 13, v254
    buffer_load_dword v255, v253, s[12:15], s60 offen
    s_branch {l2}
    {l1}:
    s_mov_b32 s12, s{xb}
    s_mov_b32 s13, s{xb+1}
    s_mov_b32 s14, 1179648
    s_sub_u32 s60, s60, 64
    s_lshl_b32 s60, s60, 13
    v_lshlrev_b32 v253, 7, v{LANE}
    buffer_load_dword v255, v253, s[12:15], s60 offen
    {l2}:
    s_mov_b32 s14, {0 if int(OPT['nox']) else 147456}''')
def k1_dma_kv_old(a):
    a('s_lshl_b32 s60, s39, 12\ns_add_u32 s61, s28, s60\ns_add_u32 s60, s27, s60\ns_mov_b32 m0, s61')
    for j in range(4):
        a(f'buffer_load_dwordx4 v{VE if j%2==0 else VO}, s[4:7], s60 offen offset:{j*1024}{NTF} lds')
    a('s_add_u32 m0, s61, 16384')
    for j in range(4):
        a(f'buffer_load_dwordx4 v{VE if j%2==0 else VO}, s[8:11], s60 offen offset:{j*1024}{NTF} lds')
    lab = a.lab()
    a(f'''s_add_u32 s28, s28, 32768
    s_cmp_eq_u32 s28, 98304
    s_cselect_b32 s28, 0, s28
    s_add_u32 s27, s27, 16384
    s_cmp_lg_u32 s27, 262144
    s_cbranch_scc1 {lab}
    s_mov_b32 s27, 0
    s_mov_b32 s4, s42
    s_mov_b32 s5, s43
    s_mov_b32 s8, s46
    s_mov_b32 s9, s47
    s_add_u32 s29, s29, 1
    s_cmp_eq_u32 s29, 1
    s_cselect_b32 s6, {0 if int(OPT['nold']) else 262144}, 0
    s_cselect_b32 s10, {0 if int(OPT['nold']) else 262144}, 0
    {lab}:''')
def k1_dma_proj(a0, c):
    P = []
    class _A:
        def __call__(s, t): P.append(t)
    a = _A()
    k1_dma_proj_(a, c)
    P = [P[0] + '\n' + P[1]] + P[2:]
    if a0 is None: return P
    for p in P: a0(p)
def k1_dma_proj_(a, c):
    base = STG + (c % 3) * CH
    a(f's_add_u32 s37, s73, {c}\ns_and_b32 s37, s37, 15\ns_lshl_b32 s38, s37, 18\ns_lshl_b32 s37, s37, 6')
    a(f's_add_u32 m0, s67, {base}\ns_add_u32 s60, s66, s37\nbuffer_load_dwordx4 v{VE}, s[12:15], s60 offen lds')
    a(f's_add_u32 m0, s67, {base+4096}\ns_add_u32 s60, s60, {4*16384}\nbuffer_load_dwordx4 v{VE}, s[12:15], s60 offen lds')
    a(f's_mov_b32 m0, {base+8192}\ns_add_u32 s60, s37, {8*16384}\ns_mov_b64 exec, s[68:69]\nbuffer_load_dwordx4 v{VE}, s[12:15], s60 offen lds\ns_mov_b64 exec, -1')
    a(f's_add_u32 m0, s71, {base+9216}\ns_add_u32 s60, s70, s38\nbuffer_load_dwordx4 v{VO}, s[16:19], s60 offen lds')
    a(f's_add_u32 m0, s71, {base+9216+1024}\ns_add_u32 s60, s60, {4*8192}\nbuffer_load_dwordx4 v{VO}, s[16:19], s60 offen lds')
def k1_qproj(a, NQ, kvload):
    q0 = 0 if NQ == 5 else 5
    ACC = lambda T, qi: (T*5+qi)*4
    AF = lambda st, T: 40 + st*8 + T*4
    BF = lambda st, qi: 56 + st*20 + qi*4
    for i in range(40): a(f'v_mov_b32 v{i}, 0')
    def reads(c):
        st = c & 1; base = (c % 3) * CH
        for T in range(2):
            for H in range(2):
                a(f'ds_read_b64_tr_b16 {vr(AF(st,T)+2*H,2)}, v{AQ} offset:{base+9216+H*1024+T*8}')
        for qi in range(NQ):
            a(f'ds_read_b128 {vr(BF(st,qi),4)}, v{T0} offset:{base+(q0+qi)*1024}')
    a(f'''v_and_b32 v{T0}, 15, v{LANE}
    v_lshrrev_b32 v{T0+1}, 2, v{T0}
    v_sub_u32 v{T0+1}, 0, v{T0+1}
    v_lshrrev_b32 v{T0+2}, 4, v{LANE}
    v_xor_b32 v{T0+1}, v{T0+1}, v{T0+2}
    v_and_b32 v{T0+1}, 3, v{T0+1}
    v_lshlrev_b32 v{T0+1}, 4, v{T0+1}
    v_lshl_add_u32 v{T0}, v{T0}, 6, v{T0+1}
    v_add_u32 v{T0}, {STG}, v{T0}''')
    if not kvload:
        for c in range(3): k1_dma_proj(a, c)
        a('s_waitcnt vmcnt(10)')
    a('s_barrier')
    reads(0)
    for c in range(16):
        if c < 15:
            if not kvload: a(f's_waitcnt vmcnt({5 if c < 14 else 0})')
            a('s_waitcnt lgkmcnt(0)\ns_barrier')
            reads(c + 1)
        else:
            a('s_waitcnt lgkmcnt(0)')
        st = c & 1
        P = k1_dma_proj(None, c + 3) if (not kvload and c + 3 < 16) else []
        for qi in range(NQ):
            for T in range(2):
                a(f'v_mfma_f32_16x16x32_bf16 {vr(ACC(T,qi),4)}, {vr(AF(st,T),4)}, {vr(BF(st,qi),4)}, {vr(ACC(T,qi),4)}')
            if P: a(P.pop(0))
        for p in P: a(p)
    a('s_barrier')
    a(f's_and_b32 s60, s3, 3\ns_lshl_b32 s60, s60, 10\ns_add_u32 s60, s60, {STG}\nv_add_u32 v{T0}, s60, v{L16}')
    for qi in range(NQ):
        for T in range(2):
            for i in range(4): a(f'v_mul_f32 v{ACC(T,qi)+i}, s65, v{ACC(T,qi)+i}')
        d = 40 + qi*4
        a(f'''v_cvt_pk_bf16_f32 v{d}, v{ACC(0,qi)}, v{ACC(0,qi)+1}
        v_cvt_pk_bf16_f32 v{d+1}, v{ACC(0,qi)+2}, v{ACC(0,qi)+3}
        v_cvt_pk_bf16_f32 v{d+2}, v{ACC(1,qi)}, v{ACC(1,qi)+1}
        v_cvt_pk_bf16_f32 v{d+3}, v{ACC(1,qi)+2}, v{ACC(1,qi)+3}
        ds_write_b128 v{T0}, {vr(d,4)} offset:{(q0+qi)*4096}''')
    a('s_waitcnt lgkmcnt(0)\ns_barrier')
def k1_variant(a, NT, kvload, NQ, stag, tag):
    O = lambda t, qi: (t*NT+qi)*4
    Q = lambda qi, s: Q0 + (qi*4+s)*4
    S = lambda qi, kt: S0 + qi*8 + kt*4
    F = lambda n: FR + n*4
    a(f'K1_{tag}:')
    if kvload:
        a(f'''v_lshrrev_b32 v{T0}, 4, v{LANE}
        v_and_b32 v{T0+1}, 15, v{LANE}
        v_lshlrev_b32 v{T0+2}, 1, v{T0}
        v_xor_b32 v{T0+3}, v{T0+1}, v{T0+2}
        v_lshlrev_b32 v{T0+3}, 4, v{T0+3}
        v_lshl_add_u32 v{VE}, v{T0}, 8, v{T0+3}
        v_xor_b32 v{VO}, 128, v{VE}''')
        for _ in range(3): k1_dma_kv(a)
    else:
        a(f'''v_lshrrev_b32 v{T0}, 4, v{LANE}
        v_and_b32 v{T0+1}, 15, v{LANE}
        v_lshrrev_b32 v{T0+2}, 2, v{LANE}
        v_sub_u32 v{T0+3}, 0, v{T0}
        v_xor_b32 v{T0+3}, v{T0+3}, v{LANE}
        v_and_b32 v{T0+3}, 3, v{T0+3}
        v_lshlrev_b32 v{T0+3}, 4, v{T0+3}
        v_lshl_add_u32 v{VE}, v{T0+2}, 10, v{T0+3}
        v_lshlrev_b32 v{T0+2}, 2, v{T0}
        v_xor_b32 v{T0+3}, v{T0+1}, v{T0+2}
        v_lshlrev_b32 v{T0+3}, 4, v{T0+3}
        v_lshl_add_u32 v{VO}, v{T0}, 13, v{T0+3}
        s_mov_b32 s60, s39
        s_lshl_b32 s66, s60, 14
        s_lshl_b32 s67, s60, 10
        s_lshl_b32 s70, s60, 16
        s_lshl_b32 s71, s60, 11
        s_lshl_b32 s61, s60, 4
        s_mov_b64 s[68:69], 0xffff
        s_lshl_b64 s[68:69], s[68:69], s61''')
    a(f'UNIT_{tag}:')
    a('''s_cmp_eq_u32 s24, 0
    s_cselect_b32 s12, s48, s50
    s_cselect_b32 s13, s49, s51
    s_cselect_b32 s16, s52, s54
    s_cselect_b32 s17, s53, s55
    s_mul_i32 s60, s24, 9437184
    s_add_u32 s20, s56, s60
    s_addc_u32 s21, s57, 0''')
    k1_qproj(a, NQ, kvload)
    if int(OPT['stamp']):
        a(f's_memtime s[74:75]\ns_waitcnt lgkmcnt(0)\ns_cmp_eq_u32 s24, 0\ns_cselect_b32 s94, s74, s94\ns_cselect_b32 s97, s97, s74')
    a(f's_lshl_b32 s60, s35, 12\ns_add_u32 s60, s60, {STG}\nv_add_u32 v{T0}, s60, v{L16}')
    for qi in range(NT):
        for s in range(4): a(f'ds_read_b128 {vr(Q(qi,s),4)}, v{T0} offset:{(qi*4+s)*1024}')
    for i in range(32*NT): a(f'v_mov_b32 v{i}, 0')
    for i in range(4*NT): a(f'v_mov_b32 v{L0+i}, 0\nv_mov_b32 v{NM+i}, 0')
    def vread(t):
        for T in range(2): a(f'ds_read_b64_tr_b16 {vr(F(t)+2*T,2)}, v{VA+t} offset:{T*4096}')
    def kread(n): a(f'ds_read_b128 {vr(F(n),4)}, v{KA+(n&3)} offset:{(n>>2)*4096}')
    def pv(dma, kreads):
        for t in range(8):
            if not stag: a(f's_waitcnt lgkmcnt({14-2*t})')
            for qi in range(NT):
                a(f'v_mfma_f32_16x16x32_bf16 {vr(O(t,qi),4)}, {vr(F(t),4)}, {vr(S(qi,0),4)}, {vr(O(t,qi),4)}')
            if t == 0:
                for qi in range(NT):
                    a(f'v_mfma_f32_16x16x32_bf16 {vr(L0+qi*4,4)}, {vr(ONES,4)}, {vr(S(qi,0),4)}, {vr(L0+qi*4,4)}')
            if kreads: kread(t)
            if dma: a(dma[t])
    def body(first):
        dma = k1_dma_pieces() if (kvload and not first) else None
        if kvload: a('s_waitcnt vmcnt(8)')
        a('s_waitcnt lgkmcnt(0)\ns_barrier')
        if stag and not first:
            pv(dma, True)
        else:
            for n in range(8): kread(n)
        for n in range(8):
            kt, s = n >> 2, n & 3
            a(f's_waitcnt lgkmcnt({7-n+2*max(n-1,0) if n>0 else 7})')
            for qi in range(NT):
                c = NM + qi*4 if s == 0 else S(qi,kt)
                a(f'v_mfma_f32_16x16x32_bf16 {vr(S(qi,kt),4)}, {vr(F(n),4)}, {vr(Q(qi,s),4)}, {vr(c,4)}')
            if n >= 1: vread(n-1)
            if dma and not stag: a(dma[n])
        if dma: k1_dma_advance(a)
        a("""s_add_u32 s31, s31, 1
        s_cmp_eq_u32 s31, 3
        s_cselect_b32 s31, 0, s31
        s_mov_b32 s30, 32768
        s_cselect_b32 s30, 0xffff0000, s30""")
        for s in range(4): a(f'v_add_u32 v{KA+s}, s30, v{KA+s}')
        if first:
            vread(7)
            slow(True)
        else:
            vals = [S(qi,0)+i for qi in range(NT) for i in range(4)] + [S(qi,1)+i for qi in range(NT) for i in range(4)]
            a(f'v_max3_f32 v{TM}, v{vals[0]}, v{vals[1]}, v{vals[2]}')
            k = 3
            while k + 1 < len(vals):
                a(f'v_max3_f32 v{TM}, v{TM}, v{vals[k]}, v{vals[k+1]}'); k += 2
            if k < len(vals): a(f'v_max_f32 v{TM}, v{TM}, v{vals[k]}')
            a(f'v_cmp_lt_f32 vcc, s64, v{TM}')
            vread(7)
            a(f's_cbranch_vccnz SLOW_{tag}\nBACK_{tag}:')
        for qi in range(NT):
            for i in range(8): a(f'v_exp_f32 v{S0+qi*8+i}, v{S0+qi*8+i}')
            for i in range(4): a(f'v_cvt_pk_bf16_f32 v{S0+qi*8+i}, v{S0+qi*8+2*i}, v{S0+qi*8+2*i+1}')
        if not stag: pv(None, False)
        for t in range(8): a(f'v_add_u32 v{VA+t}, s30, v{VA+t}')
    def slow(first):
        a(f'v_xor_b32 v{T0}, 16, v{LANE}\nv_lshlrev_b32 v{T0}, 2, v{T0}\nv_xor_b32 v{T0+1}, 32, v{LANE}\nv_lshlrev_b32 v{T0+1}, 2, v{T0+1}')
        for qi in range(NT):
            b = S0 + qi*8; m = T0+2+qi
            a(f"""v_max3_f32 v{m}, v{b}, v{b+1}, v{b+2}
            v_max3_f32 v{m}, v{m}, v{b+3}, v{b+4}
            v_max3_f32 v{m}, v{m}, v{b+5}, v{b+6}
            v_max_f32 v{m}, v{m}, v{b+7}
            ds_bpermute_b32 v{TM}, v{T0}, v{m}
            s_waitcnt lgkmcnt(0)
            v_max_f32 v{m}, v{m}, v{TM}
            ds_bpermute_b32 v{TM}, v{T0+1}, v{m}
            s_waitcnt lgkmcnt(0)
            v_max_f32 v{m}, v{m}, v{TM}""")
            if not first: a(f'v_max_f32 v{m}, 0, v{m}')
            for i in range(8): a(f'v_sub_f32 v{b+i}, v{b+i}, v{m}')
            for i in range(4): a(f'v_sub_f32 v{NM+qi*4+i}, v{NM+qi*4+i}, v{m}')
        if first: return
        for qi in range(NT):
            m = T0+2+qi
            a(f'v_sub_f32 v{m}, 0, v{m}\nv_exp_f32 v{m}, v{m}\ns_nop 0')
            for t in range(8):
                for i in range(4): a(f'v_mul_f32 v{O(t,qi)+i}, v{m}, v{O(t,qi)+i}')
            for i in range(4): a(f'v_mul_f32 v{L0+qi*4+i}, v{m}, v{L0+qi*4+i}')
        a(f's_nop 1\ns_branch BACK_{tag}')
    body(True)
    a(f's_mov_b32 s25, 1\nLOOP_{tag}:')
    body(False)
    a(f"""s_add_u32 s25, s25, 1
    s_cmp_lt_u32 s25, 16
    s_cbranch_scc1 LOOP_{tag}""")
    if stag:
        a('s_waitcnt lgkmcnt(0)')
        pv(None, False)
    if int(OPT['stamp']):
        a(f's_memtime s[74:75]\ns_waitcnt lgkmcnt(0)\ns_cmp_eq_u32 s24, 0\ns_cselect_b32 s95, s74, s95\ns_cselect_b32 s98, s98, s74')
    a('s_barrier')
    if kvload: k1_dma_kv(a)
    if int(OPT['touch']):
        lt = a.lab()
        a(f's_cmp_lg_u32 s24, 0\ns_cbranch_scc1 {lt}')
        k1_touch(a, 1)
        a(f'{lt}:')
    SA = T0; PA = T0+1
    a(f'''v_and_b32 v{T0+2}, 15, v{LANE}
    v_lshlrev_b32 v{T0+2}, 2, v{T0+2}
    s_mul_i32 s60, s3, 384
    s_add_u32 s60, s60, {STG+49152}
    v_add_u32 v{SA}, s60, v{T0+2}
    s_mul_i32 s60, s36, 384
    s_add_u32 s60, s60, {STG+49152}
    v_add_u32 v{PA}, s60, v{T0+2}
    s_nop 7''')
    for qi in range(NT):
        a(f'ds_write_b32 v{SA}, v{NM+qi*4} offset:{qi*128}\nds_write_b32 v{SA}, v{L0+qi*4} offset:{qi*128+64}')
    a('s_waitcnt lgkmcnt(0)\ns_barrier')
    for qi in range(NT):
        a(f'ds_read_b32 v{S0+qi*8}, v{PA} offset:{qi*128}\nds_read_b32 v{S0+qi*8+1}, v{PA} offset:{qi*128+64}')
    a('s_waitcnt lgkmcnt(0)')
    for qi in range(NT):
        b = S0 + qi*8
        a(f'''v_min_f32 v{b+2}, v{b}, v{NM+qi*4}
        v_sub_f32 v{b+3}, v{b+2}, v{NM+qi*4}
        v_sub_f32 v{b+4}, v{b+2}, v{b}
        v_exp_f32 v{b+3}, v{b+3}
        v_exp_f32 v{b+4}, v{b+4}
        v_mul_f32 v{b+5}, v{b+3}, v{L0+qi*4}
        v_fma_f32 v{b+5}, v{b+4}, v{b+1}, v{b+5}
        v_rcp_f32 v{b+5}, v{b+5}
        v_mul_f32 v{b+6}, v{b+3}, v{b+5}''')
        for t in range(8):
            for i in range(4): a(f'v_mul_f32 v{O(t,qi)+i}, v{b+6}, v{O(t,qi)+i}')
    a(f'''s_mul_i32 s60, s3, 6144
    s_add_u32 s60, s60, {STG}
    v_add_u32 v{SA}, s60, v{L16}
    s_mul_i32 s60, s36, 6144
    s_add_u32 s60, s60, {STG}
    v_add_u32 v{PA}, s60, v{L16}''')
    lK1 = a.lab(); lE = a.lab()
    a(f's_cmp_lg_u32 s34, 0\ns_cbranch_scc1 {lK1}')
    for kg in range(2):
        if kg == 1: a(f'{lK1}:')
        keep = 4*kg; send = 4*(1-kg)
        for rho in range(2):
            for qi in range(NT):
                for tt in range(2): a(f'ds_write_b128 v{SA}, {vr(O(send+2*rho+tt,qi),4)} offset:{(qi*2+tt)*1024}')
            a('s_waitcnt lgkmcnt(0)\ns_barrier')
            for qi in range(NT):
                for tt in range(2): a(f'ds_read_b128 {vr(FR+(qi*2+tt)*4,4)}, v{PA} offset:{(qi*2+tt)*1024}')
            a('s_waitcnt lgkmcnt(0)\ns_barrier')
            for qi in range(NT):
                for tt in range(2):
                    for i in range(4):
                        r = O(keep+2*rho+tt,qi)+i
                        a(f'v_add_f32 v{r}, v{r}, v{FR+(qi*2+tt)*4+i}')
        a(f'''s_mul_i32 s60, s32, 9
        s_add_u32 s60, s60, s35
        s_lshl_b32 s60, s60, 7
        s_lshl_b32 s61, s33, 2
        s_add_u32 s60, s60, s61
        s_add_u32 s60, s60, {2*kg}
        s_lshl_b32 s60, s60, 10''')
        for qi in range(NT):
            for uu in range(2):
                t0, t1 = keep+2*uu, keep+2*uu+1
                d = FR + (qi*2+uu)*4
                a(f'''v_cvt_pk_bf16_f32 v{d}, v{O(t0,qi)}, v{O(t0,qi)+1}
                v_cvt_pk_bf16_f32 v{d+1}, v{O(t0,qi)+2}, v{O(t0,qi)+3}
                v_cvt_pk_bf16_f32 v{d+2}, v{O(t1,qi)}, v{O(t1,qi)+1}
                v_cvt_pk_bf16_f32 v{d+3}, v{O(t1,qi)+2}, v{O(t1,qi)+3}
                s_add_u32 s61, s60, {qi*131072+uu*1024}
                buffer_store_dwordx4 {vr(d,4)}, v{L16}, s[20:23], s61 offen''')
        if kg == 0: a(f's_branch {lE}')
    a(f'{lE}:')
    if int(OPT['stamp']):
        a(f's_memtime s[74:75]\ns_waitcnt lgkmcnt(0)\ns_cmp_eq_u32 s24, 0\ns_cselect_b32 s96, s74, s96\ns_cselect_b32 s99, s99, s74')
    a(f'''s_add_u32 s24, s24, 1
    s_cmp_lt_u32 s24, 2
    s_cbranch_scc1 UNIT_{tag}
    s_waitcnt vmcnt(0)''')
    stamp_out(a)
    a('s_waitcnt vmcnt(0)\ns_endpgm')
    a(f'SLOW_{tag}:')
    slow(False)
class A2(Asm):
    n = 0
    def lab(s):
        A2.n += 1; return f'L{A2.n}'
def k1():
    a = A2()
    if int(OPT['hmap']) == 0:
        HMAP = 's_and_b32 s33, s2, 7\ns_lshl_b32 s33, s33, 2\ns_bfe_u32 s60, s2, 0x20003\ns_add_u32 s33, s33, s60\ns_lshr_b32 s32, s2, 5'
    else:
        HMAP = 's_and_b32 s33, s2, 3\ns_lshl_b32 s33, s33, 3\ns_bfe_u32 s60, s2, 0x30003\ns_add_u32 s33, s33, s60\ns_bfe_u32 s32, s2, 0x10002\ns_lshl_b32 s32, s32, 2\ns_lshr_b32 s60, s2, 6\ns_add_u32 s32, s32, s60'
    ROT = 's_mov_b32 s73, 0' if not int(OPT['rot']) else 's_lshr_b32 s73, s2, 3\ns_and_b32 s73, s73, 15'
    a(f'''s_cmp_ge_u32 s2, 256
    s_cbranch_scc1 K1_EXIT
    s_load_dwordx8 s[76:83], s[0:1], 0
    s_load_dwordx8 s[84:91], s[0:1], 40
    s_load_dwordx2 s[56:57], s[0:1], 96
    v_and_b32 v{LANE}, 63, v0
    v_lshrrev_b32 v1, 6, v0
    v_lshlrev_b32 v{L16}, 4, v{LANE}
    v_readfirstlane_b32 s3, v1
    {HMAP}
    s_lshl_b32 s60, s3, 2
    s_lshr_b32 s35, 0x75375300, s60
    s_and_b32 s35, s35, 15
    s_lshr_b32 s36, 0x43276501, s60
    s_and_b32 s36, s36, 15
    s_lshr_b32 s34, 0xE2, s3
    s_and_b32 s34, s34, 1
    s_mov_b32 s64, 0x41000000
    s_mov_b32 s65, 0x3e0293ee
    s_mov_b32 s24, 0
    {ROT}
    s_mov_b32 s27, 0
    s_mov_b32 s28, 0
    s_mov_b32 s29, 0
    s_mov_b32 s31, 0
    s_lshl_b32 s60, s32, 5
    s_add_u32 s60, s60, s33
    s_lshl_b32 s60, s60, 18
    s_mul_i32 s61, s32, 147456
    s_lshl_b32 s62, s33, 8
    s_waitcnt lgkmcnt(0)
    s_add_u32 s40, s78, s60
    s_addc_u32 s41, s79, 0
    s_add_u32 s44, s80, s60
    s_addc_u32 s45, s81, 0
    s_add_u32 s42, s86, s60
    s_addc_u32 s43, s87, 0
    s_add_u32 s46, s88, s60
    s_addc_u32 s47, s89, 0
    s_add_u32 s48, s76, s61
    s_addc_u32 s49, s77, 0
    s_add_u32 s50, s84, s61
    s_addc_u32 s51, s85, 0
    s_add_u32 s52, s82, s62
    s_addc_u32 s53, s83, 0
    s_add_u32 s54, s90, s62
    s_addc_u32 s55, s91, 0
    s_mov_b32 s4, s40
    s_mov_b32 s5, s41
    s_mov_b32 s8, s44
    s_mov_b32 s9, s45''')
    if int(OPT['stamp']):
        a('s_memrealtime s[74:75]\ns_waitcnt lgkmcnt(0)\ns_mov_b32 s92, s74')
        stamp(a, 1)
    nrKV = 0 if int(OPT['nold']) else 262144
    srd(a, 4, nrKV); srd(a, 8, nrKV); srd(a, 12, 0 if int(OPT['nox']) else 147456); srd(a, 16, 0 if int(OPT['nowq']) else 4194304); srd(a, 20, 9437184)
    k1_touch(a, 0)
    a(f'''v_and_b32 v1, 15, v{LANE}
    v_lshrrev_b32 v2, 4, v{LANE}
    v_and_b32 v3, 7, v1
    v_lshlrev_b32 v3, 1, v3
    s_lshl_b32 s60, s34, 13
    v_lshlrev_b32 v4, 8, v1
    v_add_u32 v4, s60, v4''')
    for s in range(4):
        a(f'v_add_u32 v5, {4*s}, v2\nv_xor_b32 v5, v5, v3\nv_lshl_add_u32 v{KA+s}, v5, 4, v4')
    a(f'''v_lshrrev_b32 v1, 2, v{LANE}
    v_and_b32 v3, 7, v1
    v_lshlrev_b32 v3, 1, v3
    v_bfe_u32 v5, v{LANE}, 1, 1
    v_xor_b32 v5, v5, v3
    v_lshlrev_b32 v5, 4, v5
    v_and_b32 v6, 1, v{LANE}
    v_lshl_add_u32 v5, v6, 3, v5
    v_lshl_add_u32 v5, v1, 8, v5
    s_add_u32 s60, s60, 16384
    v_add_u32 v5, s60, v5''')
    for t in range(8): a(f'v_xor_b32 v{VA+t}, {32*t}, v5')
    a(f'''v_bfe_u32 v1, v{LANE}, 2, 2
    v_lshl_add_u32 v3, v2, 3, v1
    v_lshlrev_b32 v3, 8, v3
    s_and_b32 s60, s3, 3
    s_lshl_b32 s60, s60, 2
    v_and_b32 v5, 3, v{LANE}
    v_add_u32 v5, s60, v5
    v_lshlrev_b32 v1, 2, v1
    v_xor_b32 v5, v5, v1
    v_lshl_add_u32 v3, v5, 4, v3
    v_add_u32 v{AQ}, {STG}, v3''')
    for i in range(4): a(f'v_mov_b32 v{ONES+i}, 0x3f803f80')
    if int(OPT['prio']):
        a('s_cmp_ge_u32 s3, 4\ns_cbranch_scc0 K1_NOPRIO\ns_setprio 1\nK1_NOPRIO:')
    a('''s_and_b32 s39, s3, 1
    s_lshr_b32 s60, s3, 2
    s_lshl_b32 s60, s60, 1
    s_add_u32 s39, s39, s60
    s_cmp_lt_u32 s3, 2
    s_cbranch_scc1 K1_A
    s_cmp_lt_u32 s3, 4
    s_cbranch_scc1 K1_J1
    s_cmp_lt_u32 s3, 6
    s_cbranch_scc1 K1_J2
    s_branch K1_D
    K1_J1:
    s_branch K1_B
    K1_J2:
    s_branch K1_C''')
    st = int(OPT['stag'])
    k1_variant(a, 3, False, 5, 0, 'A'); k1_variant(a, 2, True, 5, 0, 'B'); k1_variant(a, 2, False, 4, st, 'C'); k1_variant(a, 2, True, 4, st, 'D')
    a('K1_EXIT:\ns_endpgm')
    return a.text()
from gen2 import k2
def desc(name, vg, sg=102):
    return f'''.amdhsa_kernel {name}
  .amdhsa_next_free_vgpr {vg}
  .amdhsa_next_free_sgpr {sg}
  .amdhsa_accum_offset {(vg+3)//4*4}
  .amdhsa_group_segment_fixed_size 0
  .amdhsa_kernarg_size 104
  .amdhsa_user_sgpr_count 2
  .amdhsa_user_sgpr_kernarg_segment_ptr 1
  .amdhsa_system_sgpr_workgroup_id_x 1
.end_amdhsa_kernel
'''
hdr = open('cdna_kernels/' + NAME + '.s.ref').read().split('; Override')[0]
k2text, k2lds, k2grid, k2vg = k2(A2, OPT)
out = hdr + f'''; @launch kernel=mha_attn_kernel grid=(256,1,1) block=(512,1,1) lds={LDS1}
; @launch kernel=mha_oproj_kernel grid=({k2grid},1,1) block=(512,1,1) lds={k2lds}
.amdgcn_target "amdgcn-amd-amdhsa--gfx950"
.text
.globl mha_attn_kernel
.p2align 8
.type mha_attn_kernel,@function
mha_attn_kernel:
{k1()}
.globl mha_oproj_kernel
.p2align 8
.type mha_oproj_kernel,@function
mha_oproj_kernel:
{k2text}
.section .rodata,"a"
.p2align 6
{desc('mha_attn_kernel', 256)}
.p2align 6
{desc('mha_oproj_kernel', k2vg)}
'''
open(sys.argv[1], 'w').write(out)
```

```python
import sys
from asmlib import *
NAME = 'concat_heads__mha_block_cached__mha_block_cached__near_ridge'
STG = 98304; CH = 17408; LDS1 = STG + 3*CH
OPT = dict(nt='', prio=0, stamp=0, nold=0, rot=0, hmap=0, stag=1, nox=0, nowq=0, touch=1, early=1, emask=32)
for a in sys.argv[2:]:
    k, v = a.split('='); OPT[k] = v
NTF = ' nt' if OPT['nt'] == '1' else ''
L0=96; Q0=108; S0=156; NM=180; FR=192; KA=224; VA=228; ONES=236; VE=240; VO=241; L16=242; AQ=243; LANE=244; T0=245; TM=252
STAMP_N = [0]
def stamp(a, i):
    if int(OPT['stamp']):
        a(f's_memtime s[74:75]\ns_waitcnt lgkmcnt(0)\ns_mov_b32 s{92+i}, s74')
def stamp_out(a):
    if int(OPT['stamp']):
        a("""s_memrealtime s[74:75]
        s_waitcnt lgkmcnt(0)
        s_mov_b32 s101, s74
        s_add_u32 s76, s56, 0x4000000
        s_addc_u32 s77, s57, 0
        s_mov_b32 s78, 0x100000
        s_mov_b32 s79, 0x20000
        s_lshl_b32 s60, s2, 3
        s_add_u32 s60, s60, s3
        s_lshl_b32 s60, s60, 6
        v_mov_b32 v1, 0""")
        for i in range(10):
            a(f'v_mov_b32 v2, s{92+i}\nbuffer_store_dword v2, v1, s[76:79], s60 offen offset:{i*4}')
def srd(a, base, nrec):
    a(f's_mov_b32 s{base+2}, {nrec}\ns_mov_b32 s{base+3}, 0x20000')
def k1_dma_pieces():
    P = []
    P.append('s_lshl_b32 s60, s39, 12\ns_add_u32 s61, s28, s60\ns_add_u32 s62, s27, s60\ns_mov_b32 m0, s61\n' +
             f'buffer_load_dwordx4 v{VE}, s[4:7], s62 offen offset:0{NTF} lds')
    for j in range(1, 4):
        P.append(f'buffer_load_dwordx4 v{VE if j%2==0 else VO}, s[4:7], s62 offen offset:{j*1024}{NTF} lds')
    P.append(f's_add_u32 m0, s61, 16384\nbuffer_load_dwordx4 v{VE}, s[8:11], s62 offen offset:0{NTF} lds')
    for j in range(1, 4):
        P.append(f'buffer_load_dwordx4 v{VE if j%2==0 else VO}, s[8:11], s62 offen offset:{j*1024}{NTF} lds')
    return P
def k1_dma_advance(a):
    lab = a.lab()
    nr = 0 if int(OPT['nold']) else 262144
    a(f'''s_add_u32 s28, s28, 32768
    s_cmp_eq_u32 s28, 98304
    s_cselect_b32 s28, 0, s28
    s_add_u32 s27, s27, 16384
    s_cmp_lg_u32 s27, 262144
    s_cbranch_scc1 {lab}
    s_mov_b32 s27, 0
    s_mov_b32 s4, s42
    s_mov_b32 s5, s43
    s_mov_b32 s8, s46
    s_mov_b32 s9, s47
    s_add_u32 s29, s29, 1
    s_cmp_eq_u32 s29, 1
    s_cselect_b32 s6, {nr}, 0
    s_cselect_b32 s10, {nr}, 0
    {lab}:''')
def k1_dma_kv(a):
    for p in k1_dma_pieces(): a(p)
    k1_dma_advance(a)
def k1_touch(a, br):
    if not int(OPT['touch']): return
    l1 = a.lab(); l2 = a.lab()
    xb = 76 + 8*br; wb = 82 + 8*br
    a(f'''s_lshr_b32 s60, s2, 3
    s_lshl_b32 s60, s60, 3
    s_add_u32 s60, s60, s3
    s_cmp_lt_u32 s60, 64
    s_cbranch_scc0 {l1}
    s_mov_b32 s12, s{wb}
    s_mov_b32 s13, s{wb+1}
    s_mov_b32 s14, 4194304
    s_lshl_b32 s60, s60, 16
    s_and_b32 s61, s2, 7
    s_lshl_b32 s61, s61, 10
    s_add_u32 s60, s60, s61
    v_lshrrev_b32 v253, 3, v{LANE}
    v_and_b32 v254, 7, v{LANE}
    v_lshlrev_b32 v254, 7, v254
    v_lshl_add_u32 v253, v253, 13, v254
    buffer_load_dword v255, v253, s[12:15], s60 offen
    s_branch {l2}
    {l1}:
    s_mov_b32 s12, s{xb}
    s_mov_b32 s13, s{xb+1}
    s_mov_b32 s14, 1179648
    s_sub_u32 s60, s60, 64
    s_lshl_b32 s60, s60, 13
    v_lshlrev_b32 v253, 7, v{LANE}
    buffer_load_dword v255, v253, s[12:15], s60 offen
    {l2}:
    s_mov_b32 s14, {0 if int(OPT['nox']) else 147456}''')
def k1_dma_kv_old(a):
    a('s_lshl_b32 s60, s39, 12\ns_add_u32 s61, s28, s60\ns_add_u32 s60, s27, s60\ns_mov_b32 m0, s61')
    for j in range(4):
        a(f'buffer_load_dwordx4 v{VE if j%2==0 else VO}, s[4:7], s60 offen offset:{j*1024}{NTF} lds')
    a('s_add_u32 m0, s61, 16384')
    for j in range(4):
        a(f'buffer_load_dwordx4 v{VE if j%2==0 else VO}, s[8:11], s60 offen offset:{j*1024}{NTF} lds')
    lab = a.lab()
    a(f'''s_add_u32 s28, s28, 32768
    s_cmp_eq_u32 s28, 98304
    s_cselect_b32 s28, 0, s28
    s_add_u32 s27, s27, 16384
    s_cmp_lg_u32 s27, 262144
    s_cbranch_scc1 {lab}
    s_mov_b32 s27, 0
    s_mov_b32 s4, s42
    s_mov_b32 s5, s43
    s_mov_b32 s8, s46
    s_mov_b32 s9, s47
    s_add_u32 s29, s29, 1
    s_cmp_eq_u32 s29, 1
    s_cselect_b32 s6, {0 if int(OPT['nold']) else 262144}, 0
    s_cselect_b32 s10, {0 if int(OPT['nold']) else 262144}, 0
    {lab}:''')
def k1_dma_proj(a0, c):
    P = []
    class _A:
        def __call__(s, t): P.append(t)
    a = _A()
    k1_dma_proj_(a, c)
    P = [P[0] + '\n' + P[1]] + P[2:]
    if a0 is None: return P
    for p in P: a0(p)
def k1_dma_proj_(a, c):
    base = STG + (c % 3) * CH
    a(f's_add_u32 s37, s73, {c}\ns_and_b32 s37, s37, 15\ns_lshl_b32 s38, s37, 18\ns_lshl_b32 s37, s37, 6')
    a(f's_add_u32 m0, s67, {base}\ns_add_u32 s60, s66, s37\nbuffer_load_dwordx4 v{VE}, s[12:15], s60 offen lds')
    a(f's_add_u32 m0, s67, {base+4096}\ns_add_u32 s60, s60, {4*16384}\nbuffer_load_dwordx4 v{VE}, s[12:15], s60 offen lds')
    a(f's_mov_b32 m0, {base+8192}\ns_add_u32 s60, s37, {8*16384}\ns_mov_b64 exec, s[68:69]\nbuffer_load_dwordx4 v{VE}, s[12:15], s60 offen lds\ns_mov_b64 exec, -1')
    a(f's_add_u32 m0, s71, {base+9216}\ns_add_u32 s60, s70, s38\nbuffer_load_dwordx4 v{VO}, s[16:19], s60 offen lds')
    a(f's_add_u32 m0, s71, {base+9216+1024}\ns_add_u32 s60, s60, {4*8192}\nbuffer_load_dwordx4 v{VO}, s[16:19], s60 offen lds')
def k1_qproj(a, NQ, kvload):
    q0 = 0 if NQ == 5 else 5
    ACC = lambda T, qi: (T*5+qi)*4
    AF = lambda st, T: 40 + st*8 + T*4
    BF = lambda st, qi: 56 + st*20 + qi*4
    for i in range(40): a(f'v_mov_b32 v{i}, 0')
    def reads(c):
        st = c & 1; base = (c % 3) * CH
        for T in range(2):
            for H in range(2):
                a(f'ds_read_b64_tr_b16 {vr(AF(st,T)+2*H,2)}, v{AQ} offset:{base+9216+H*1024+T*8}')
        for qi in range(NQ):
            a(f'ds_read_b128 {vr(BF(st,qi),4)}, v{T0} offset:{base+(q0+qi)*1024}')
    a(f'''v_and_b32 v{T0}, 15, v{LANE}
    v_lshrrev_b32 v{T0+1}, 2, v{T0}
    v_sub_u32 v{T0+1}, 0, v{T0+1}
    v_lshrrev_b32 v{T0+2}, 4, v{LANE}
    v_xor_b32 v{T0+1}, v{T0+1}, v{T0+2}
    v_and_b32 v{T0+1}, 3, v{T0+1}
    v_lshlrev_b32 v{T0+1}, 4, v{T0+1}
    v_lshl_add_u32 v{T0}, v{T0}, 6, v{T0+1}
    v_add_u32 v{T0}, {STG}, v{T0}''')
    if not kvload:
        for c in range(3): k1_dma_proj(a, c)
        a('s_waitcnt vmcnt(10)')
    a('s_barrier')
    reads(0)
    for c in range(16):
        if c < 15:
            if not kvload: a(f's_waitcnt vmcnt({5 if c < 14 else 0})')
            a('s_waitcnt lgkmcnt(0)\ns_barrier')
            reads(c + 1)
        else:
            a('s_waitcnt lgkmcnt(0)')
        st = c & 1
        P = k1_dma_proj(None, c + 3) if (not kvload and c + 3 < 16) else []
        for qi in range(NQ):
            for T in range(2):
                a(f'v_mfma_f32_16x16x32_bf16 {vr(ACC(T,qi),4)}, {vr(AF(st,T),4)}, {vr(BF(st,qi),4)}, {vr(ACC(T,qi),4)}')
            if P: a(P.pop(0))
        for p in P: a(p)
    a('s_barrier')
    a(f's_and_b32 s60, s3, 3\ns_lshl_b32 s60, s60, 10\ns_add_u32 s60, s60, {STG}\nv_add_u32 v{T0}, s60, v{L16}')
    for qi in range(NQ):
        for T in range(2):
            for i in range(4): a(f'v_mul_f32 v{ACC(T,qi)+i}, s65, v{ACC(T,qi)+i}')
        d = 40 + qi*4
        a(f'''v_cvt_pk_bf16_f32 v{d}, v{ACC(0,qi)}, v{ACC(0,qi)+1}
        v_cvt_pk_bf16_f32 v{d+1}, v{ACC(0,qi)+2}, v{ACC(0,qi)+3}
        v_cvt_pk_bf16_f32 v{d+2}, v{ACC(1,qi)}, v{ACC(1,qi)+1}
        v_cvt_pk_bf16_f32 v{d+3}, v{ACC(1,qi)+2}, v{ACC(1,qi)+3}
        ds_write_b128 v{T0}, {vr(d,4)} offset:{(q0+qi)*4096}''')
    a('s_waitcnt lgkmcnt(0)\ns_barrier')
def k1_variant(a, NT, kvload, NQ, stag, tag):
    O = lambda t, qi: (t*NT+qi)*4
    Q = lambda qi, s: Q0 + (qi*4+s)*4
    S = lambda qi, kt: S0 + qi*8 + kt*4
    F = lambda n: FR + n*4
    a(f'K1_{tag}:')
    if kvload:
        a(f'''v_lshrrev_b32 v{T0}, 4, v{LANE}
        v_and_b32 v{T0+1}, 15, v{LANE}
        v_lshlrev_b32 v{T0+2}, 1, v{T0}
        v_xor_b32 v{T0+3}, v{T0+1}, v{T0+2}
        v_lshlrev_b32 v{T0+3}, 4, v{T0+3}
        v_lshl_add_u32 v{VE}, v{T0}, 8, v{T0+3}
        v_xor_b32 v{VO}, 128, v{VE}''')
        for _ in range(3): k1_dma_kv(a)
    else:
        a(f'''v_lshrrev_b32 v{T0}, 4, v{LANE}
        v_and_b32 v{T0+1}, 15, v{LANE}
        v_lshrrev_b32 v{T0+2}, 2, v{LANE}
        v_sub_u32 v{T0+3}, 0, v{T0}
        v_xor_b32 v{T0+3}, v{T0+3}, v{LANE}
        v_and_b32 v{T0+3}, 3, v{T0+3}
        v_lshlrev_b32 v{T0+3}, 4, v{T0+3}
        v_lshl_add_u32 v{VE}, v{T0+2}, 10, v{T0+3}
        v_lshlrev_b32 v{T0+2}, 2, v{T0}
        v_xor_b32 v{T0+3}, v{T0+1}, v{T0+2}
        v_lshlrev_b32 v{T0+3}, 4, v{T0+3}
        v_lshl_add_u32 v{VO}, v{T0}, 13, v{T0+3}
        s_mov_b32 s60, s39
        s_lshl_b32 s66, s60, 14
        s_lshl_b32 s67, s60, 10
        s_lshl_b32 s70, s60, 16
        s_lshl_b32 s71, s60, 11
        s_lshl_b32 s61, s60, 4
        s_mov_b64 s[68:69], 0xffff
        s_lshl_b64 s[68:69], s[68:69], s61''')
    a(f'UNIT_{tag}:')
    def readq():
        a(f's_lshl_b32 s60, s35, 12\ns_add_u32 s60, s60, {STG}\nv_add_u32 v{T0}, s60, v{L16}')
        for qi in range(NT):
            for s in range(4): a(f'ds_read_b128 {vr(Q(qi,s),4)}, v{T0} offset:{(qi*4+s)*1024}')
    a(f'''s_mul_i32 s60, s24, 9437184
    s_add_u32 s20, s56, s60
    s_addc_u32 s21, s57, 0
    s_mov_b32 s58, s24
    s_and_b32 s60, s26, s24
    s_cmp_lg_u32 s60, 0
    s_cbranch_scc1 INIT_{tag}
    QP_{tag}:
    s_cmp_eq_u32 s58, 0
    s_cselect_b32 s12, s48, s50
    s_cselect_b32 s13, s49, s51
    s_cselect_b32 s16, s52, s54
    s_cselect_b32 s17, s53, s55''')
    k1_qproj(a, NQ, kvload)
    if int(OPT['stamp']):
        a(f's_memtime s[74:75]\ns_waitcnt lgkmcnt(0)\ns_cmp_eq_u32 s24, 0\ns_cselect_b32 s94, s74, s94\ns_cselect_b32 s97, s97, s74')
    a(f's_cmp_lg_u32 s58, s24\ns_cbranch_scc1 INIT_{tag}')
    readq()
    a(f'''s_cmp_eq_u32 s26, 0
    s_cbranch_scc1 INIT_{tag}
    s_waitcnt lgkmcnt(0)
    s_barrier
    s_mov_b32 s58, 1
    s_branch QP_{tag}
    INIT_{tag}:''')
    for i in range(32*NT): a(f'v_mov_b32 v{i}, 0')
    for i in range(4*NT): a(f'v_mov_b32 v{L0+i}, 0\nv_mov_b32 v{NM+i}, 0')
    def vread(t):
        for T in range(2): a(f'ds_read_b64_tr_b16 {vr(F(t)+2*T,2)}, v{VA+t} offset:{T*4096}')
    def kread(n): a(f'ds_read_b128 {vr(F(n),4)}, v{KA+(n&3)} offset:{(n>>2)*4096}')
    def pv(dma, kreads):
        for t in range(8):
            if not stag: a(f's_waitcnt lgkmcnt({14-2*t})')
            for qi in range(NT):
                a(f'v_mfma_f32_16x16x32_bf16 {vr(O(t,qi),4)}, {vr(F(t),4)}, {vr(S(qi,0),4)}, {vr(O(t,qi),4)}')
            if t == 0:
                for qi in range(NT):
                    a(f'v_mfma_f32_16x16x32_bf16 {vr(L0+qi*4,4)}, {vr(ONES,4)}, {vr(S(qi,0),4)}, {vr(L0+qi*4,4)}')
            if kreads: kread(t)
            if dma: a(dma[t])
    def body(first):
        dma = k1_dma_pieces() if (kvload and not first) else None
        if kvload: a('s_waitcnt vmcnt(8)')
        a('s_waitcnt lgkmcnt(0)\ns_barrier')
        if stag and not first:
            pv(dma, True)
        else:
            for n in range(8): kread(n)
        for n in range(8):
            kt, s = n >> 2, n & 3
            a(f's_waitcnt lgkmcnt({7-n+2*max(n-1,0) if n>0 else 7})')
            for qi in range(NT):
                c = NM + qi*4 if s == 0 else S(qi,kt)
                a(f'v_mfma_f32_16x16x32_bf16 {vr(S(qi,kt),4)}, {vr(F(n),4)}, {vr(Q(qi,s),4)}, {vr(c,4)}')
            if n >= 1: vread(n-1)
            if dma and not stag: a(dma[n])
        if dma: k1_dma_advance(a)
        a("""s_add_u32 s31, s31, 1
        s_cmp_eq_u32 s31, 3
        s_cselect_b32 s31, 0, s31
        s_mov_b32 s30, 32768
        s_cselect_b32 s30, 0xffff0000, s30""")
        for s in range(4): a(f'v_add_u32 v{KA+s}, s30, v{KA+s}')
        if first:
            vread(7)
            slow(True)
        else:
            vals = [S(qi,0)+i for qi in range(NT) for i in range(4)] + [S(qi,1)+i for qi in range(NT) for i in range(4)]
            a(f'v_max3_f32 v{TM}, v{vals[0]}, v{vals[1]}, v{vals[2]}')
            k = 3
            while k + 1 < len(vals):
                a(f'v_max3_f32 v{TM}, v{TM}, v{vals[k]}, v{vals[k+1]}'); k += 2
            if k < len(vals): a(f'v_max_f32 v{TM}, v{TM}, v{vals[k]}')
            a(f'v_cmp_lt_f32 vcc, s64, v{TM}')
            vread(7)
            a(f's_cbranch_vccnz SLOW_{tag}\nBACK_{tag}:')
        for qi in range(NT):
            for i in range(8): a(f'v_exp_f32 v{S0+qi*8+i}, v{S0+qi*8+i}')
            for i in range(4): a(f'v_cvt_pk_bf16_f32 v{S0+qi*8+i}, v{S0+qi*8+2*i}, v{S0+qi*8+2*i+1}')
        if not stag: pv(None, False)
        for t in range(8): a(f'v_add_u32 v{VA+t}, s30, v{VA+t}')
    def slow(first):
        a(f'v_xor_b32 v{T0}, 16, v{LANE}\nv_lshlrev_b32 v{T0}, 2, v{T0}\nv_xor_b32 v{T0+1}, 32, v{LANE}\nv_lshlrev_b32 v{T0+1}, 2, v{T0+1}')
        for qi in range(NT):
            b = S0 + qi*8; m = T0+2+qi
            a(f"""v_max3_f32 v{m}, v{b}, v{b+1}, v{b+2}
            v_max3_f32 v{m}, v{m}, v{b+3}, v{b+4}
            v_max3_f32 v{m}, v{m}, v{b+5}, v{b+6}
            v_max_f32 v{m}, v{m}, v{b+7}
            ds_bpermute_b32 v{TM}, v{T0}, v{m}
            s_waitcnt lgkmcnt(0)
            v_max_f32 v{m}, v{m}, v{TM}
            ds_bpermute_b32 v{TM}, v{T0+1}, v{m}
            s_waitcnt lgkmcnt(0)
            v_max_f32 v{m}, v{m}, v{TM}""")
            if not first: a(f'v_max_f32 v{m}, 0, v{m}')
            for i in range(8): a(f'v_sub_f32 v{b+i}, v{b+i}, v{m}')
            for i in range(4): a(f'v_sub_f32 v{NM+qi*4+i}, v{NM+qi*4+i}, v{m}')
        if first: return
        for qi in range(NT):
            m = T0+2+qi
            a(f'v_sub_f32 v{m}, 0, v{m}\nv_exp_f32 v{m}, v{m}\ns_nop 0')
            for t in range(8):
                for i in range(4): a(f'v_mul_f32 v{O(t,qi)+i}, v{m}, v{O(t,qi)+i}')
            for i in range(4): a(f'v_mul_f32 v{L0+qi*4+i}, v{m}, v{L0+qi*4+i}')
        a(f's_nop 1\ns_branch BACK_{tag}')
    body(True)
    a(f's_mov_b32 s25, 1\nLOOP_{tag}:')
    body(False)
    a(f"""s_add_u32 s25, s25, 1
    s_cmp_lt_u32 s25, 16
    s_cbranch_scc1 LOOP_{tag}""")
    if stag:
        a('s_waitcnt lgkmcnt(0)')
        pv(None, False)
    if int(OPT['stamp']):
        a(f's_memtime s[74:75]\ns_waitcnt lgkmcnt(0)\ns_cmp_eq_u32 s24, 0\ns_cselect_b32 s95, s74, s95\ns_cselect_b32 s98, s98, s74')
    lq = a.lab()
    a(f's_cmp_gt_u32 s26, s24\ns_cbranch_scc0 {lq}')
    readq()
    a(f's_waitcnt lgkmcnt(0)\n{lq}:')
    a('s_barrier')
    if kvload: k1_dma_kv(a)
    if int(OPT['touch']):
        lt = a.lab()
        a(f's_cmp_lg_u32 s24, 0\ns_cbranch_scc1 {lt}')
        k1_touch(a, 1)
        a(f'{lt}:')
    SA = T0; PA = T0+1
    a(f'''v_and_b32 v{T0+2}, 15, v{LANE}
    v_lshlrev_b32 v{T0+2}, 2, v{T0+2}
    s_mul_i32 s60, s3, 384
    s_add_u32 s60, s60, {STG+49152}
    v_add_u32 v{SA}, s60, v{T0+2}
    s_mul_i32 s60, s36, 384
    s_add_u32 s60, s60, {STG+49152}
    v_add_u32 v{PA}, s60, v{T0+2}
    s_nop 7''')
    for qi in range(NT):
        a(f'ds_write_b32 v{SA}, v{NM+qi*4} offset:{qi*128}\nds_write_b32 v{SA}, v{L0+qi*4} offset:{qi*128+64}')
    a('s_waitcnt lgkmcnt(0)\ns_barrier')
    for qi in range(NT):
        a(f'ds_read_b32 v{S0+qi*8}, v{PA} offset:{qi*128}\nds_read_b32 v{S0+qi*8+1}, v{PA} offset:{qi*128+64}')
    a('s_waitcnt lgkmcnt(0)')
    for qi in range(NT):
        b = S0 + qi*8
        a(f'''v_min_f32 v{b+2}, v{b}, v{NM+qi*4}
        v_sub_f32 v{b+3}, v{b+2}, v{NM+qi*4}
        v_sub_f32 v{b+4}, v{b+2}, v{b}
        v_exp_f32 v{b+3}, v{b+3}
        v_exp_f32 v{b+4}, v{b+4}
        v_mul_f32 v{b+5}, v{b+3}, v{L0+qi*4}
        v_fma_f32 v{b+5}, v{b+4}, v{b+1}, v{b+5}
        v_rcp_f32 v{b+5}, v{b+5}
        v_mul_f32 v{b+6}, v{b+3}, v{b+5}''')
        for t in range(8):
            for i in range(4): a(f'v_mul_f32 v{O(t,qi)+i}, v{b+6}, v{O(t,qi)+i}')
    a(f'''s_mul_i32 s60, s3, 6144
    s_add_u32 s60, s60, {STG}
    v_add_u32 v{SA}, s60, v{L16}
    s_mul_i32 s60, s36, 6144
    s_add_u32 s60, s60, {STG}
    v_add_u32 v{PA}, s60, v{L16}''')
    lK1 = a.lab(); lE = a.lab()
    a(f's_cmp_lg_u32 s34, 0\ns_cbranch_scc1 {lK1}')
    for kg in range(2):
        if kg == 1: a(f'{lK1}:')
        keep = 4*kg; send = 4*(1-kg)
        for rho in range(2):
            for qi in range(NT):
                for tt in range(2): a(f'ds_write_b128 v{SA}, {vr(O(send+2*rho+tt,qi),4)} offset:{(qi*2+tt)*1024}')
            a('s_waitcnt lgkmcnt(0)\ns_barrier')
            for qi in range(NT):
                for tt in range(2): a(f'ds_read_b128 {vr(FR+(qi*2+tt)*4,4)}, v{PA} offset:{(qi*2+tt)*1024}')
            a('s_waitcnt lgkmcnt(0)\ns_barrier')
            for qi in range(NT):
                for tt in range(2):
                    for i in range(4):
                        r = O(keep+2*rho+tt,qi)+i
                        a(f'v_add_f32 v{r}, v{r}, v{FR+(qi*2+tt)*4+i}')
        a(f'''s_mul_i32 s60, s32, 9
        s_add_u32 s60, s60, s35
        s_lshl_b32 s60, s60, 7
        s_lshl_b32 s61, s33, 2
        s_add_u32 s60, s60, s61
        s_add_u32 s60, s60, {2*kg}
        s_lshl_b32 s60, s60, 10''')
        for qi in range(NT):
            for uu in range(2):
                t0, t1 = keep+2*uu, keep+2*uu+1
                d = FR + (qi*2+uu)*4
                a(f'''v_cvt_pk_bf16_f32 v{d}, v{O(t0,qi)}, v{O(t0,qi)+1}
                v_cvt_pk_bf16_f32 v{d+1}, v{O(t0,qi)+2}, v{O(t0,qi)+3}
                v_cvt_pk_bf16_f32 v{d+2}, v{O(t1,qi)}, v{O(t1,qi)+1}
                v_cvt_pk_bf16_f32 v{d+3}, v{O(t1,qi)+2}, v{O(t1,qi)+3}
                s_add_u32 s61, s60, {qi*131072+uu*1024}
                buffer_store_dwordx4 {vr(d,4)}, v{L16}, s[20:23], s61 offen''')
        if kg == 0: a(f's_branch {lE}')
    a(f'{lE}:')
    if int(OPT['stamp']):
        a(f's_memtime s[74:75]\ns_waitcnt lgkmcnt(0)\ns_cmp_eq_u32 s24, 0\ns_cselect_b32 s96, s74, s96\ns_cselect_b32 s99, s99, s74')
    a(f'''s_add_u32 s24, s24, 1
    s_cmp_lt_u32 s24, 2
    s_cbranch_scc1 UNIT_{tag}
    s_waitcnt vmcnt(0)''')
    stamp_out(a)
    a('s_waitcnt vmcnt(0)\ns_endpgm')
    a(f'SLOW_{tag}:')
    slow(False)
class A2(Asm):
    n = 0
    def lab(s):
        A2.n += 1; return f'L{A2.n}'
def k1():
    a = A2()
    if int(OPT['hmap']) == 0:
        HMAP = 's_and_b32 s33, s2, 7\ns_lshl_b32 s33, s33, 2\ns_bfe_u32 s60, s2, 0x20003\ns_add_u32 s33, s33, s60\ns_lshr_b32 s32, s2, 5'
    else:
        HMAP = 's_and_b32 s33, s2, 3\ns_lshl_b32 s33, s33, 3\ns_bfe_u32 s60, s2, 0x30003\ns_add_u32 s33, s33, s60\ns_bfe_u32 s32, s2, 0x10002\ns_lshl_b32 s32, s32, 2\ns_lshr_b32 s60, s2, 6\ns_add_u32 s32, s32, s60'
    ROT = 's_mov_b32 s73, 0' if not int(OPT['rot']) else 's_lshr_b32 s73, s2, 3\ns_and_b32 s73, s73, 15'
    EARLY = f"s_and_b32 s26, s2, {OPT['emask']}\ns_cselect_b32 s26, 1, 0" if int(OPT['early']) else 's_mov_b32 s26, 0'
    a(f'''s_cmp_ge_u32 s2, 256
    s_cbranch_scc1 K1_EXIT
    s_load_dwordx8 s[76:83], s[0:1], 0
    s_load_dwordx8 s[84:91], s[0:1], 40
    s_load_dwordx2 s[56:57], s[0:1], 96
    v_and_b32 v{LANE}, 63, v0
    v_lshrrev_b32 v1, 6, v0
    v_lshlrev_b32 v{L16}, 4, v{LANE}
    v_readfirstlane_b32 s3, v1
    {HMAP}
    s_lshl_b32 s60, s3, 2
    s_lshr_b32 s35, 0x75375300, s60
    s_and_b32 s35, s35, 15
    s_lshr_b32 s36, 0x43276501, s60
    s_and_b32 s36, s36, 15
    s_lshr_b32 s34, 0xE2, s3
    s_and_b32 s34, s34, 1
    s_mov_b32 s64, 0x41000000
    s_mov_b32 s65, 0x3e0293ee
    s_mov_b32 s24, 0
    {EARLY}
    {ROT}
    s_mov_b32 s27, 0
    s_mov_b32 s28, 0
    s_mov_b32 s29, 0
    s_mov_b32 s31, 0
    s_lshl_b32 s60, s32, 5
    s_add_u32 s60, s60, s33
    s_lshl_b32 s60, s60, 18
    s_mul_i32 s61, s32, 147456
    s_lshl_b32 s62, s33, 8
    s_waitcnt lgkmcnt(0)
    s_add_u32 s40, s78, s60
    s_addc_u32 s41, s79, 0
    s_add_u32 s44, s80, s60
    s_addc_u32 s45, s81, 0
    s_add_u32 s42, s86, s60
    s_addc_u32 s43, s87, 0
    s_add_u32 s46, s88, s60
    s_addc_u32 s47, s89, 0
    s_add_u32 s48, s76, s61
    s_addc_u32 s49, s77, 0
    s_add_u32 s50, s84, s61
    s_addc_u32 s51, s85, 0
    s_add_u32 s52, s82, s62
    s_addc_u32 s53, s83, 0
    s_add_u32 s54, s90, s62
    s_addc_u32 s55, s91, 0
    s_mov_b32 s4, s40
    s_mov_b32 s5, s41
    s_mov_b32 s8, s44
    s_mov_b32 s9, s45''')
    if int(OPT['stamp']):
        a('s_memrealtime s[74:75]\ns_waitcnt lgkmcnt(0)\ns_mov_b32 s92, s74')
        stamp(a, 1)
    nrKV = 0 if int(OPT['nold']) else 262144
    srd(a, 4, nrKV); srd(a, 8, nrKV); srd(a, 12, 0 if int(OPT['nox']) else 147456); srd(a, 16, 0 if int(OPT['nowq']) else 4194304); srd(a, 20, 9437184)
    k1_touch(a, 0)
    if int(OPT['early']): k1_touch(a, 1)
    a(f'''v_and_b32 v1, 15, v{LANE}
    v_lshrrev_b32 v2, 4, v{LANE}
    v_and_b32 v3, 7, v1
    v_lshlrev_b32 v3, 1, v3
    s_lshl_b32 s60, s34, 13
    v_lshlrev_b32 v4, 8, v1
    v_add_u32 v4, s60, v4''')
    for s in range(4):
        a(f'v_add_u32 v5, {4*s}, v2\nv_xor_b32 v5, v5, v3\nv_lshl_add_u32 v{KA+s}, v5, 4, v4')
    a(f'''v_lshrrev_b32 v1, 2, v{LANE}
    v_and_b32 v3, 7, v1
    v_lshlrev_b32 v3, 1, v3
    v_bfe_u32 v5, v{LANE}, 1, 1
    v_xor_b32 v5, v5, v3
    v_lshlrev_b32 v5, 4, v5
    v_and_b32 v6, 1, v{LANE}
    v_lshl_add_u32 v5, v6, 3, v5
    v_lshl_add_u32 v5, v1, 8, v5
    s_add_u32 s60, s60, 16384
    v_add_u32 v5, s60, v5''')
    for t in range(8): a(f'v_xor_b32 v{VA+t}, {32*t}, v5')
    a(f'''v_bfe_u32 v1, v{LANE}, 2, 2
    v_lshl_add_u32 v3, v2, 3, v1
    v_lshlrev_b32 v3, 8, v3
    s_and_b32 s60, s3, 3
    s_lshl_b32 s60, s60, 2
    v_and_b32 v5, 3, v{LANE}
    v_add_u32 v5, s60, v5
    v_lshlrev_b32 v1, 2, v1
    v_xor_b32 v5, v5, v1
    v_lshl_add_u32 v3, v5, 4, v3
    v_add_u32 v{AQ}, {STG}, v3''')
    for i in range(4): a(f'v_mov_b32 v{ONES+i}, 0x3f803f80')
    if int(OPT['prio']):
        a('s_cmp_ge_u32 s3, 4\ns_cbranch_scc0 K1_NOPRIO\ns_setprio 1\nK1_NOPRIO:')
    a('''s_and_b32 s39, s3, 1
    s_lshr_b32 s60, s3, 2
    s_lshl_b32 s60, s60, 1
    s_add_u32 s39, s39, s60
    s_cmp_lt_u32 s3, 2
    s_cbranch_scc1 K1_A
    s_cmp_lt_u32 s3, 4
    s_cbranch_scc1 K1_J1
    s_cmp_lt_u32 s3, 6
    s_cbranch_scc1 K1_J2
    s_branch K1_D
    K1_J1:
    s_branch K1_B
    K1_J2:
    s_branch K1_C''')
    st = int(OPT['stag'])
    k1_variant(a, 3, False, 5, 0, 'A'); k1_variant(a, 2, True, 5, 0, 'B'); k1_variant(a, 2, False, 4, st, 'C'); k1_variant(a, 2, True, 4, st, 'D')
    a('K1_EXIT:\ns_endpgm')
    return a.text()
from gen2 import k2
def desc(name, vg, sg=102):
    return f'''.amdhsa_kernel {name}
  .amdhsa_next_free_vgpr {vg}
  .amdhsa_next_free_sgpr {sg}
  .amdhsa_accum_offset {(vg+3)//4*4}
  .amdhsa_group_segment_fixed_size 0
  .amdhsa_kernarg_size 104
  .amdhsa_user_sgpr_count 2
  .amdhsa_user_sgpr_kernarg_segment_ptr 1
  .amdhsa_system_sgpr_workgroup_id_x 1
.end_amdhsa_kernel
'''
hdr = open('cdna_kernels/' + NAME + '.s.ref').read().split('; Override')[0]
k2text, k2lds, k2grid, k2vg = k2(A2, OPT)
out = hdr + f'''; @launch kernel=mha_attn_kernel grid=(256,1,1) block=(512,1,1) lds={LDS1}
; @launch kernel=mha_oproj_kernel grid=({k2grid},1,1) block=(512,1,1) lds={k2lds}
.amdgcn_target "amdgcn-amd-amdhsa--gfx950"
.text
.globl mha_attn_kernel
.p2align 8
.type mha_attn_kernel,@function
mha_attn_kernel:
{k1()}
.globl mha_oproj_kernel
.p2align 8
.type mha_oproj_kernel,@function
mha_oproj_kernel:
{k2text}
.section .rodata,"a"
.p2align 6
{desc('mha_attn_kernel', 256)}
.p2align 6
{desc('mha_oproj_kernel', k2vg)}
'''
open(sys.argv[1], 'w').write(out)
```

```python
import sys
from asmlib import *
NAME = 'concat_heads__mha_block_cached__mha_block_cached__near_ridge'
STG = 98304; CH = 17408; LDS1 = STG + 3*CH
OPT = dict(nt='', prio=0, stamp=0, nold=0, rot=0, hmap=0, stag=1, nox=0, nowq=0, touch=1, early=0, emask=32, ring4=1)
for a in sys.argv[2:]:
    k, v = a.split('='); OPT[k] = v
R4 = int(OPT['ring4']); NSLOT = 4 if R4 else 3
NTF = ' nt' if OPT['nt'] == '1' else ''
L0=96; Q0=108; S0=156; NM=180; FR=192; KA=224; VA=228; ONES=236; VE=240; VO=241; L16=242; AQ=243; LANE=244; T0=245; TM=252
STAMP_N = [0]
def stamp(a, i):
    if int(OPT['stamp']):
        a(f's_memtime s[74:75]\ns_waitcnt lgkmcnt(0)\ns_mov_b32 s{92+i}, s74')
def stamp_out(a):
    if int(OPT['stamp']):
        a("""s_memrealtime s[74:75]
        s_waitcnt lgkmcnt(0)
        s_mov_b32 s101, s74
        s_add_u32 s76, s56, 0x4000000
        s_addc_u32 s77, s57, 0
        s_mov_b32 s78, 0x100000
        s_mov_b32 s79, 0x20000
        s_lshl_b32 s60, s2, 3
        s_add_u32 s60, s60, s3
        s_lshl_b32 s60, s60, 6
        v_mov_b32 v1, 0""")
        for i in range(10):
            a(f'v_mov_b32 v2, s{92+i}\nbuffer_store_dword v2, v1, s[76:79], s60 offen offset:{i*4}')
def srd(a, base, nrec):
    a(f's_mov_b32 s{base+2}, {nrec}\ns_mov_b32 s{base+3}, 0x20000')
def k1_dma_pieces():
    P = []
    P.append('s_lshl_b32 s60, s39, 12\ns_add_u32 s61, s28, s60\ns_add_u32 s62, s27, s60\ns_mov_b32 m0, s61\n' +
             f'buffer_load_dwordx4 v{VE}, s[4:7], s62 offen offset:0{NTF} lds')
    for j in range(1, 4):
        P.append(f'buffer_load_dwordx4 v{VE if j%2==0 else VO}, s[4:7], s62 offen offset:{j*1024}{NTF} lds')
    P.append(f's_add_u32 m0, s61, 16384\nbuffer_load_dwordx4 v{VE}, s[8:11], s62 offen offset:0{NTF} lds')
    for j in range(1, 4):
        P.append(f'buffer_load_dwordx4 v{VE if j%2==0 else VO}, s[8:11], s62 offen offset:{j*1024}{NTF} lds')
    return P
def k1_dma_advance(a):
    lab = a.lab()
    nr = 0 if int(OPT['nold']) else 262144
    a(f'''s_add_u32 s28, s28, 32768
    s_cmp_eq_u32 s28, {NSLOT*32768}
    s_cselect_b32 s28, 0, s28
    s_add_u32 s27, s27, 16384
    s_cmp_lg_u32 s27, 262144
    s_cbranch_scc1 {lab}
    s_mov_b32 s27, 0
    s_mov_b32 s4, s42
    s_mov_b32 s5, s43
    s_mov_b32 s8, s46
    s_mov_b32 s9, s47
    s_add_u32 s29, s29, 1
    s_cmp_eq_u32 s29, 1
    s_cselect_b32 s6, {nr}, 0
    s_cselect_b32 s10, {nr}, 0
    {lab}:''')
def k1_dma_kv(a):
    for p in k1_dma_pieces(): a(p)
    k1_dma_advance(a)
def k1_touch(a, br):
    if not int(OPT['touch']): return
    l1 = a.lab(); l2 = a.lab()
    xb = 76 + 8*br; wb = 82 + 8*br
    a(f'''s_lshr_b32 s60, s2, 3
    s_lshl_b32 s60, s60, 3
    s_add_u32 s60, s60, s3
    s_cmp_lt_u32 s60, 64
    s_cbranch_scc0 {l1}
    s_mov_b32 s12, s{wb}
    s_mov_b32 s13, s{wb+1}
    s_mov_b32 s14, 4194304
    s_lshl_b32 s60, s60, 16
    s_and_b32 s61, s2, 7
    s_lshl_b32 s61, s61, 10
    s_add_u32 s60, s60, s61
    v_lshrrev_b32 v253, 3, v{LANE}
    v_and_b32 v254, 7, v{LANE}
    v_lshlrev_b32 v254, 7, v254
    v_lshl_add_u32 v253, v253, 13, v254
    buffer_load_dword v255, v253, s[12:15], s60 offen
    s_branch {l2}
    {l1}:
    s_mov_b32 s12, s{xb}
    s_mov_b32 s13, s{xb+1}
    s_mov_b32 s14, 1179648
    s_sub_u32 s60, s60, 64
    s_lshl_b32 s60, s60, 13
    v_lshlrev_b32 v253, 7, v{LANE}
    buffer_load_dword v255, v253, s[12:15], s60 offen
    {l2}:
    s_mov_b32 s14, {0 if int(OPT['nox']) else 147456}''')
def k1_dma_kv_old(a):
    a('s_lshl_b32 s60, s39, 12\ns_add_u32 s61, s28, s60\ns_add_u32 s60, s27, s60\ns_mov_b32 m0, s61')
    for j in range(4):
        a(f'buffer_load_dwordx4 v{VE if j%2==0 else VO}, s[4:7], s60 offen offset:{j*1024}{NTF} lds')
    a('s_add_u32 m0, s61, 16384')
    for j in range(4):
        a(f'buffer_load_dwordx4 v{VE if j%2==0 else VO}, s[8:11], s60 offen offset:{j*1024}{NTF} lds')
    lab = a.lab()
    a(f'''s_add_u32 s28, s28, 32768
    s_cmp_eq_u32 s28, 98304
    s_cselect_b32 s28, 0, s28
    s_add_u32 s27, s27, 16384
    s_cmp_lg_u32 s27, 262144
    s_cbranch_scc1 {lab}
    s_mov_b32 s27, 0
    s_mov_b32 s4, s42
    s_mov_b32 s5, s43
    s_mov_b32 s8, s46
    s_mov_b32 s9, s47
    s_add_u32 s29, s29, 1
    s_cmp_eq_u32 s29, 1
    s_cselect_b32 s6, {0 if int(OPT['nold']) else 262144}, 0
    s_cselect_b32 s10, {0 if int(OPT['nold']) else 262144}, 0
    {lab}:''')
def k1_dma_proj(a0, c):
    P = []
    class _A:
        def __call__(s, t): P.append(t)
    a = _A()
    k1_dma_proj_(a, c)
    P = [P[0] + '\n' + P[1]] + P[2:]
    if a0 is None: return P
    for p in P: a0(p)
def k1_dma_proj_(a, c):
    base = STG + (c % 3) * CH
    a(f's_add_u32 s37, s73, {c}\ns_and_b32 s37, s37, 15\ns_lshl_b32 s38, s37, 18\ns_lshl_b32 s37, s37, 6')
    a(f's_add_u32 m0, s67, {base}\ns_add_u32 s60, s66, s37\nbuffer_load_dwordx4 v{VE}, s[12:15], s60 offen lds')
    a(f's_add_u32 m0, s67, {base+4096}\ns_add_u32 s60, s60, {4*16384}\nbuffer_load_dwordx4 v{VE}, s[12:15], s60 offen lds')
    a(f's_mov_b32 m0, {base+8192}\ns_add_u32 s60, s37, {8*16384}\ns_mov_b64 exec, s[68:69]\nbuffer_load_dwordx4 v{VE}, s[12:15], s60 offen lds\ns_mov_b64 exec, -1')
    a(f's_add_u32 m0, s71, {base+9216}\ns_add_u32 s60, s70, s38\nbuffer_load_dwordx4 v{VO}, s[16:19], s60 offen lds')
    a(f's_add_u32 m0, s71, {base+9216+1024}\ns_add_u32 s60, s60, {4*8192}\nbuffer_load_dwordx4 v{VO}, s[16:19], s60 offen lds')
def k1_qproj(a, NQ, kvload):
    q0 = 0 if NQ == 5 else 5
    ACC = lambda T, qi: (T*5+qi)*4
    AF = lambda st, T: 40 + st*8 + T*4
    BF = lambda st, qi: 56 + st*20 + qi*4
    for i in range(40): a(f'v_mov_b32 v{i}, 0')
    def reads(c):
        st = c & 1; base = (c % 3) * CH
        for T in range(2):
            for H in range(2):
                a(f'ds_read_b64_tr_b16 {vr(AF(st,T)+2*H,2)}, v{AQ} offset:{base+9216+H*1024+T*8}')
        for qi in range(NQ):
            a(f'ds_read_b128 {vr(BF(st,qi),4)}, v{T0} offset:{base+(q0+qi)*1024}')
    a(f'''v_and_b32 v{T0}, 15, v{LANE}
    v_lshrrev_b32 v{T0+1}, 2, v{T0}
    v_sub_u32 v{T0+1}, 0, v{T0+1}
    v_lshrrev_b32 v{T0+2}, 4, v{LANE}
    v_xor_b32 v{T0+1}, v{T0+1}, v{T0+2}
    v_and_b32 v{T0+1}, 3, v{T0+1}
    v_lshlrev_b32 v{T0+1}, 4, v{T0+1}
    v_lshl_add_u32 v{T0}, v{T0}, 6, v{T0+1}
    v_add_u32 v{T0}, {STG}, v{T0}''')
    if not kvload:
        for c in range(3): k1_dma_proj(a, c)
        a('s_waitcnt vmcnt(10)')
    a('s_barrier')
    reads(0)
    for c in range(16):
        if c < 15:
            if not kvload: a(f's_waitcnt vmcnt({5 if c < 14 else 0})')
            a('s_waitcnt lgkmcnt(0)\ns_barrier')
            reads(c + 1)
        else:
            a('s_waitcnt lgkmcnt(0)')
        st = c & 1
        P = k1_dma_proj(None, c + 3) if (not kvload and c + 3 < 16) else []
        for qi in range(NQ):
            for T in range(2):
                a(f'v_mfma_f32_16x16x32_bf16 {vr(ACC(T,qi),4)}, {vr(AF(st,T),4)}, {vr(BF(st,qi),4)}, {vr(ACC(T,qi),4)}')
            if P: a(P.pop(0))
        for p in P: a(p)
    a('s_barrier')
    a(f's_and_b32 s60, s3, 3\ns_lshl_b32 s60, s60, 10\ns_add_u32 s60, s60, {STG}\nv_add_u32 v{T0}, s60, v{L16}')
    for qi in range(NQ):
        for T in range(2):
            for i in range(4): a(f'v_mul_f32 v{ACC(T,qi)+i}, s65, v{ACC(T,qi)+i}')
        d = 40 + qi*4
        a(f'''v_cvt_pk_bf16_f32 v{d}, v{ACC(0,qi)}, v{ACC(0,qi)+1}
        v_cvt_pk_bf16_f32 v{d+1}, v{ACC(0,qi)+2}, v{ACC(0,qi)+3}
        v_cvt_pk_bf16_f32 v{d+2}, v{ACC(1,qi)}, v{ACC(1,qi)+1}
        v_cvt_pk_bf16_f32 v{d+3}, v{ACC(1,qi)+2}, v{ACC(1,qi)+3}
        ds_write_b128 v{T0}, {vr(d,4)} offset:{(q0+qi)*4096}''')
    a('s_waitcnt lgkmcnt(0)\ns_barrier')
def k1_variant(a, NT, kvload, NQ, stag, tag):
    O = lambda t, qi: (t*NT+qi)*4
    Q = lambda qi, s: Q0 + (qi*4+s)*4
    S = lambda qi, kt: S0 + qi*8 + kt*4
    F = lambda n: FR + n*4
    a(f'K1_{tag}:')
    if kvload:
        a(f'''v_lshrrev_b32 v{T0}, 4, v{LANE}
        v_and_b32 v{T0+1}, 15, v{LANE}
        v_lshlrev_b32 v{T0+2}, 1, v{T0}
        v_xor_b32 v{T0+3}, v{T0+1}, v{T0+2}
        v_lshlrev_b32 v{T0+3}, 4, v{T0+3}
        v_lshl_add_u32 v{VE}, v{T0}, 8, v{T0+3}
        v_xor_b32 v{VO}, 128, v{VE}''')
        for _ in range(3): k1_dma_kv(a)
    else:
        a(f'''v_lshrrev_b32 v{T0}, 4, v{LANE}
        v_and_b32 v{T0+1}, 15, v{LANE}
        v_lshrrev_b32 v{T0+2}, 2, v{LANE}
        v_sub_u32 v{T0+3}, 0, v{T0}
        v_xor_b32 v{T0+3}, v{T0+3}, v{LANE}
        v_and_b32 v{T0+3}, 3, v{T0+3}
        v_lshlrev_b32 v{T0+3}, 4, v{T0+3}
        v_lshl_add_u32 v{VE}, v{T0+2}, 10, v{T0+3}
        v_lshlrev_b32 v{T0+2}, 2, v{T0}
        v_xor_b32 v{T0+3}, v{T0+1}, v{T0+2}
        v_lshlrev_b32 v{T0+3}, 4, v{T0+3}
        v_lshl_add_u32 v{VO}, v{T0}, 13, v{T0+3}
        s_mov_b32 s60, s39
        s_lshl_b32 s66, s60, 14
        s_lshl_b32 s67, s60, 10
        s_lshl_b32 s70, s60, 16
        s_lshl_b32 s71, s60, 11
        s_lshl_b32 s61, s60, 4
        s_mov_b64 s[68:69], 0xffff
        s_lshl_b64 s[68:69], s[68:69], s61''')
    a(f'UNIT_{tag}:')
    def readq():
        a(f's_lshl_b32 s60, s35, 12\ns_add_u32 s60, s60, {STG}\nv_add_u32 v{T0}, s60, v{L16}')
        for qi in range(NT):
            for s in range(4): a(f'ds_read_b128 {vr(Q(qi,s),4)}, v{T0} offset:{(qi*4+s)*1024}')
    a(f'''s_mul_i32 s60, s24, 9437184
    s_add_u32 s20, s56, s60
    s_addc_u32 s21, s57, 0
    s_mov_b32 s58, s24
    s_and_b32 s60, s26, s24
    s_cmp_lg_u32 s60, 0
    s_cbranch_scc1 INIT_{tag}
    QP_{tag}:
    s_cmp_eq_u32 s58, 0
    s_cselect_b32 s12, s48, s50
    s_cselect_b32 s13, s49, s51
    s_cselect_b32 s16, s52, s54
    s_cselect_b32 s17, s53, s55''')
    k1_qproj(a, NQ, kvload)
    if int(OPT['stamp']):
        a(f's_memtime s[74:75]\ns_waitcnt lgkmcnt(0)\ns_cmp_eq_u32 s24, 0\ns_cselect_b32 s94, s74, s94\ns_cselect_b32 s97, s97, s74')
    a(f's_cmp_lg_u32 s58, s24\ns_cbranch_scc1 INIT_{tag}')
    readq()
    a(f'''s_cmp_eq_u32 s26, 0
    s_cbranch_scc1 INIT_{tag}
    s_waitcnt lgkmcnt(0)
    s_barrier
    s_mov_b32 s58, 1
    s_branch QP_{tag}
    INIT_{tag}:''')
    for i in range(32*NT): a(f'v_mov_b32 v{i}, 0')
    for i in range(4*NT): a(f'v_mov_b32 v{L0+i}, 0\nv_mov_b32 v{NM+i}, 0')
    def vread(t):
        for T in range(2): a(f'ds_read_b64_tr_b16 {vr(F(t)+2*T,2)}, v{VA+t} offset:{T*4096}')
    def kread(n): a(f'ds_read_b128 {vr(F(n),4)}, v{KA+(n&3)} offset:{(n>>2)*4096}')
    def pv(dma, kreads):
        for t in range(8):
            if not stag: a(f's_waitcnt lgkmcnt({14-2*t})')
            for qi in range(NT):
                a(f'v_mfma_f32_16x16x32_bf16 {vr(O(t,qi),4)}, {vr(F(t),4)}, {vr(S(qi,0),4)}, {vr(O(t,qi),4)}')
            if t == 0:
                for qi in range(NT):
                    a(f'v_mfma_f32_16x16x32_bf16 {vr(L0+qi*4,4)}, {vr(ONES,4)}, {vr(S(qi,0),4)}, {vr(L0+qi*4,4)}')
            if kreads: kread(t)
            if dma: a(dma[t])
    def body(first):
        dma = k1_dma_pieces() if (kvload and (R4 or not first)) else None
        if kvload: a(f's_waitcnt vmcnt({16 if R4 else 8})')
        a('s_waitcnt lgkmcnt(0)\ns_barrier')
        if stag and not first:
            pv(dma, True)
        else:
            for n in range(8): kread(n)
        for n in range(8):
            kt, s = n >> 2, n & 3
            a(f's_waitcnt lgkmcnt({7-n+2*max(n-1,0) if n>0 else 7})')
            for qi in range(NT):
                c = NM + qi*4 if s == 0 else S(qi,kt)
                a(f'v_mfma_f32_16x16x32_bf16 {vr(S(qi,kt),4)}, {vr(F(n),4)}, {vr(Q(qi,s),4)}, {vr(c,4)}')
            if n >= 1: vread(n-1)
            if dma and (first or not stag): a(dma[n])
        if dma: k1_dma_advance(a)
        a(f"""s_add_u32 s31, s31, 1
        s_cmp_eq_u32 s31, {NSLOT}
        s_cselect_b32 s31, 0, s31
        s_mov_b32 s30, 32768
        s_cselect_b32 s30, {hex((1<<32) - (NSLOT-1)*32768)}, s30""")
        for s in range(4): a(f'v_add_u32 v{KA+s}, s30, v{KA+s}')
        if first:
            vread(7)
            slow(True)
        else:
            vals = [S(qi,0)+i for qi in range(NT) for i in range(4)] + [S(qi,1)+i for qi in range(NT) for i in range(4)]
            a(f'v_max3_f32 v{TM}, v{vals[0]}, v{vals[1]}, v{vals[2]}')
            k = 3
            while k + 1 < len(vals):
                a(f'v_max3_f32 v{TM}, v{TM}, v{vals[k]}, v{vals[k+1]}'); k += 2
            if k < len(vals): a(f'v_max_f32 v{TM}, v{TM}, v{vals[k]}')
            a(f'v_cmp_lt_f32 vcc, s64, v{TM}')
            vread(7)
            a(f's_cbranch_vccnz SLOW_{tag}\nBACK_{tag}:')
        for qi in range(NT):
            for i in range(8): a(f'v_exp_f32 v{S0+qi*8+i}, v{S0+qi*8+i}')
            for i in range(4): a(f'v_cvt_pk_bf16_f32 v{S0+qi*8+i}, v{S0+qi*8+2*i}, v{S0+qi*8+2*i+1}')
        if not stag: pv(None, False)
        for t in range(8): a(f'v_add_u32 v{VA+t}, s30, v{VA+t}')
    def slow(first):
        a(f'v_xor_b32 v{T0}, 16, v{LANE}\nv_lshlrev_b32 v{T0}, 2, v{T0}\nv_xor_b32 v{T0+1}, 32, v{LANE}\nv_lshlrev_b32 v{T0+1}, 2, v{T0+1}')
        for qi in range(NT):
            b = S0 + qi*8; m = T0+2+qi
            a(f"""v_max3_f32 v{m}, v{b}, v{b+1}, v{b+2}
            v_max3_f32 v{m}, v{m}, v{b+3}, v{b+4}
            v_max3_f32 v{m}, v{m}, v{b+5}, v{b+6}
            v_max_f32 v{m}, v{m}, v{b+7}
            ds_bpermute_b32 v{TM}, v{T0}, v{m}
            s_waitcnt lgkmcnt(0)
            v_max_f32 v{m}, v{m}, v{TM}
            ds_bpermute_b32 v{TM}, v{T0+1}, v{m}
            s_waitcnt lgkmcnt(0)
            v_max_f32 v{m}, v{m}, v{TM}""")
            if not first: a(f'v_max_f32 v{m}, 0, v{m}')
            for i in range(8): a(f'v_sub_f32 v{b+i}, v{b+i}, v{m}')
            for i in range(4): a(f'v_sub_f32 v{NM+qi*4+i}, v{NM+qi*4+i}, v{m}')
        if first: return
        for qi in range(NT):
            m = T0+2+qi
            a(f'v_sub_f32 v{m}, 0, v{m}\nv_exp_f32 v{m}, v{m}\ns_nop 0')
            for t in range(8):
                for i in range(4): a(f'v_mul_f32 v{O(t,qi)+i}, v{m}, v{O(t,qi)+i}')
            for i in range(4): a(f'v_mul_f32 v{L0+qi*4+i}, v{m}, v{L0+qi*4+i}')
        a(f's_nop 1\ns_branch BACK_{tag}')
    body(True)
    a(f's_mov_b32 s25, 1\nLOOP_{tag}:')
    body(False)
    a(f"""s_add_u32 s25, s25, 1
    s_cmp_lt_u32 s25, 16
    s_cbranch_scc1 LOOP_{tag}""")
    if stag:
        a('s_waitcnt lgkmcnt(0)')
        pv(None, False)
    if int(OPT['stamp']):
        a(f's_memtime s[74:75]\ns_waitcnt lgkmcnt(0)\ns_cmp_eq_u32 s24, 0\ns_cselect_b32 s95, s74, s95\ns_cselect_b32 s98, s98, s74')
    lq = a.lab()
    a(f's_cmp_gt_u32 s26, s24\ns_cbranch_scc0 {lq}')
    readq()
    a(f's_waitcnt lgkmcnt(0)\n{lq}:')
    a('s_barrier')
    if kvload and not R4: k1_dma_kv(a)
    if int(OPT['touch']):
        lt = a.lab()
        a(f's_cmp_lg_u32 s24, 0\ns_cbranch_scc1 {lt}')
        k1_touch(a, 1)
        a(f'{lt}:')
    SA = T0; PA = T0+1
    a(f'''v_and_b32 v{T0+2}, 15, v{LANE}
    v_lshlrev_b32 v{T0+2}, 2, v{T0+2}
    s_mul_i32 s60, s3, 384
    s_add_u32 s60, s60, {STG+49152}
    v_add_u32 v{SA}, s60, v{T0+2}
    s_mul_i32 s60, s36, 384
    s_add_u32 s60, s60, {STG+49152}
    v_add_u32 v{PA}, s60, v{T0+2}
    s_nop 7''')
    for qi in range(NT):
        a(f'ds_write_b32 v{SA}, v{NM+qi*4} offset:{qi*128}\nds_write_b32 v{SA}, v{L0+qi*4} offset:{qi*128+64}')
    a('s_waitcnt lgkmcnt(0)\ns_barrier')
    for qi in range(NT):
        a(f'ds_read_b32 v{S0+qi*8}, v{PA} offset:{qi*128}\nds_read_b32 v{S0+qi*8+1}, v{PA} offset:{qi*128+64}')
    a('s_waitcnt lgkmcnt(0)')
    for qi in range(NT):
        b = S0 + qi*8
        a(f'''v_min_f32 v{b+2}, v{b}, v{NM+qi*4}
        v_sub_f32 v{b+3}, v{b+2}, v{NM+qi*4}
        v_sub_f32 v{b+4}, v{b+2}, v{b}
        v_exp_f32 v{b+3}, v{b+3}
        v_exp_f32 v{b+4}, v{b+4}
        v_mul_f32 v{b+5}, v{b+3}, v{L0+qi*4}
        v_fma_f32 v{b+5}, v{b+4}, v{b+1}, v{b+5}
        v_rcp_f32 v{b+5}, v{b+5}
        v_mul_f32 v{b+6}, v{b+3}, v{b+5}''')
        for t in range(8):
            for i in range(4): a(f'v_mul_f32 v{O(t,qi)+i}, v{b+6}, v{O(t,qi)+i}')
    a(f'''s_mul_i32 s60, s3, 6144
    s_add_u32 s60, s60, {STG}
    v_add_u32 v{SA}, s60, v{L16}
    s_mul_i32 s60, s36, 6144
    s_add_u32 s60, s60, {STG}
    v_add_u32 v{PA}, s60, v{L16}''')
    lK1 = a.lab(); lE = a.lab()
    a(f's_cmp_lg_u32 s34, 0\ns_cbranch_scc1 {lK1}')
    for kg in range(2):
        if kg == 1: a(f'{lK1}:')
        keep = 4*kg; send = 4*(1-kg)
        for rho in range(2):
            for qi in range(NT):
                for tt in range(2): a(f'ds_write_b128 v{SA}, {vr(O(send+2*rho+tt,qi),4)} offset:{(qi*2+tt)*1024}')
            a('s_waitcnt lgkmcnt(0)\ns_barrier')
            for qi in range(NT):
                for tt in range(2): a(f'ds_read_b128 {vr(FR+(qi*2+tt)*4,4)}, v{PA} offset:{(qi*2+tt)*1024}')
            a('s_waitcnt lgkmcnt(0)\ns_barrier')
            for qi in range(NT):
                for tt in range(2):
                    for i in range(4):
                        r = O(keep+2*rho+tt,qi)+i
                        a(f'v_add_f32 v{r}, v{r}, v{FR+(qi*2+tt)*4+i}')
        a(f'''s_mul_i32 s60, s32, 9
        s_add_u32 s60, s60, s35
        s_lshl_b32 s60, s60, 7
        s_lshl_b32 s61, s33, 2
        s_add_u32 s60, s60, s61
        s_add_u32 s60, s60, {2*kg}
        s_lshl_b32 s60, s60, 10''')
        for qi in range(NT):
            for uu in range(2):
                t0, t1 = keep+2*uu, keep+2*uu+1
                d = FR + (qi*2+uu)*4
                a(f'''v_cvt_pk_bf16_f32 v{d}, v{O(t0,qi)}, v{O(t0,qi)+1}
                v_cvt_pk_bf16_f32 v{d+1}, v{O(t0,qi)+2}, v{O(t0,qi)+3}
                v_cvt_pk_bf16_f32 v{d+2}, v{O(t1,qi)}, v{O(t1,qi)+1}
                v_cvt_pk_bf16_f32 v{d+3}, v{O(t1,qi)+2}, v{O(t1,qi)+3}
                s_add_u32 s61, s60, {qi*131072+uu*1024}
                buffer_store_dwordx4 {vr(d,4)}, v{L16}, s[20:23], s61 offen''')
        if kg == 0: a(f's_branch {lE}')
    a(f'{lE}:')
    if int(OPT['stamp']):
        a(f's_memtime s[74:75]\ns_waitcnt lgkmcnt(0)\ns_cmp_eq_u32 s24, 0\ns_cselect_b32 s96, s74, s96\ns_cselect_b32 s99, s99, s74')
    a(f'''s_add_u32 s24, s24, 1
    s_cmp_lt_u32 s24, 2
    s_cbranch_scc1 UNIT_{tag}
    s_waitcnt vmcnt(0)''')
    stamp_out(a)
    a('s_waitcnt vmcnt(0)\ns_endpgm')
    a(f'SLOW_{tag}:')
    slow(False)
class A2(Asm):
    n = 0
    def lab(s):
        A2.n += 1; return f'L{A2.n}'
def k1():
    a = A2()
    if int(OPT['hmap']) == 0:
        HMAP = 's_and_b32 s33, s2, 7\ns_lshl_b32 s33, s33, 2\ns_bfe_u32 s60, s2, 0x20003\ns_add_u32 s33, s33, s60\ns_lshr_b32 s32, s2, 5'
    else:
        HMAP = 's_and_b32 s33, s2, 3\ns_lshl_b32 s33, s33, 3\ns_bfe_u32 s60, s2, 0x30003\ns_add_u32 s33, s33, s60\ns_bfe_u32 s32, s2, 0x10002\ns_lshl_b32 s32, s32, 2\ns_lshr_b32 s60, s2, 6\ns_add_u32 s32, s32, s60'
    ROT = 's_mov_b32 s73, 0' if not int(OPT['rot']) else 's_lshr_b32 s73, s2, 3\ns_and_b32 s73, s73, 15'
    EARLY = f"s_and_b32 s26, s2, {OPT['emask']}\ns_cselect_b32 s26, 1, 0" if int(OPT['early']) else 's_mov_b32 s26, 0'
    a(f'''s_cmp_ge_u32 s2, 256
    s_cbranch_scc1 K1_EXIT
    s_load_dwordx8 s[76:83], s[0:1], 0
    s_load_dwordx8 s[84:91], s[0:1], 40
    s_load_dwordx2 s[56:57], s[0:1], 96
    v_and_b32 v{LANE}, 63, v0
    v_lshrrev_b32 v1, 6, v0
    v_lshlrev_b32 v{L16}, 4, v{LANE}
    v_readfirstlane_b32 s3, v1
    {HMAP}
    s_lshl_b32 s60, s3, 2
    s_lshr_b32 s35, 0x75375300, s60
    s_and_b32 s35, s35, 15
    s_lshr_b32 s36, 0x43276501, s60
    s_and_b32 s36, s36, 15
    s_lshr_b32 s34, 0xE2, s3
    s_and_b32 s34, s34, 1
    s_mov_b32 s64, 0x41000000
    s_mov_b32 s65, 0x3e0293ee
    s_mov_b32 s24, 0
    {EARLY}
    {ROT}
    s_mov_b32 s27, 0
    s_mov_b32 s28, 0
    s_mov_b32 s29, 0
    s_mov_b32 s31, 0
    s_lshl_b32 s60, s32, 5
    s_add_u32 s60, s60, s33
    s_lshl_b32 s60, s60, 18
    s_mul_i32 s61, s32, 147456
    s_lshl_b32 s62, s33, 8
    s_waitcnt lgkmcnt(0)
    s_add_u32 s40, s78, s60
    s_addc_u32 s41, s79, 0
    s_add_u32 s44, s80, s60
    s_addc_u32 s45, s81, 0
    s_add_u32 s42, s86, s60
    s_addc_u32 s43, s87, 0
    s_add_u32 s46, s88, s60
    s_addc_u32 s47, s89, 0
    s_add_u32 s48, s76, s61
    s_addc_u32 s49, s77, 0
    s_add_u32 s50, s84, s61
    s_addc_u32 s51, s85, 0
    s_add_u32 s52, s82, s62
    s_addc_u32 s53, s83, 0
    s_add_u32 s54, s90, s62
    s_addc_u32 s55, s91, 0
    s_mov_b32 s4, s40
    s_mov_b32 s5, s41
    s_mov_b32 s8, s44
    s_mov_b32 s9, s45''')
    if int(OPT['stamp']):
        a('s_memrealtime s[74:75]\ns_waitcnt lgkmcnt(0)\ns_mov_b32 s92, s74')
        stamp(a, 1)
    nrKV = 0 if int(OPT['nold']) else 262144
    srd(a, 4, nrKV); srd(a, 8, nrKV); srd(a, 12, 0 if int(OPT['nox']) else 147456); srd(a, 16, 0 if int(OPT['nowq']) else 4194304); srd(a, 20, 9437184)
    k1_touch(a, 0)
    if int(OPT['early']): k1_touch(a, 1)
    a(f'''v_and_b32 v1, 15, v{LANE}
    v_lshrrev_b32 v2, 4, v{LANE}
    v_and_b32 v3, 7, v1
    v_lshlrev_b32 v3, 1, v3
    s_lshl_b32 s60, s34, 13
    v_lshlrev_b32 v4, 8, v1
    v_add_u32 v4, s60, v4''')
    for s in range(4):
        a(f'v_add_u32 v5, {4*s}, v2\nv_xor_b32 v5, v5, v3\nv_lshl_add_u32 v{KA+s}, v5, 4, v4')
    a(f'''v_lshrrev_b32 v1, 2, v{LANE}
    v_and_b32 v3, 7, v1
    v_lshlrev_b32 v3, 1, v3
    v_bfe_u32 v5, v{LANE}, 1, 1
    v_xor_b32 v5, v5, v3
    v_lshlrev_b32 v5, 4, v5
    v_and_b32 v6, 1, v{LANE}
    v_lshl_add_u32 v5, v6, 3, v5
    v_lshl_add_u32 v5, v1, 8, v5
    s_add_u32 s60, s60, 16384
    v_add_u32 v5, s60, v5''')
    for t in range(8): a(f'v_xor_b32 v{VA+t}, {32*t}, v5')
    a(f'''v_bfe_u32 v1, v{LANE}, 2, 2
    v_lshl_add_u32 v3, v2, 3, v1
    v_lshlrev_b32 v3, 8, v3
    s_and_b32 s60, s3, 3
    s_lshl_b32 s60, s60, 2
    v_and_b32 v5, 3, v{LANE}
    v_add_u32 v5, s60, v5
    v_lshlrev_b32 v1, 2, v1
    v_xor_b32 v5, v5, v1
    v_lshl_add_u32 v3, v5, 4, v3
    v_add_u32 v{AQ}, {STG}, v3''')
    for i in range(4): a(f'v_mov_b32 v{ONES+i}, 0x3f803f80')
    if int(OPT['prio']):
        a('s_cmp_ge_u32 s3, 4\ns_cbranch_scc0 K1_NOPRIO\ns_setprio 1\nK1_NOPRIO:')
    a('''s_and_b32 s39, s3, 1
    s_lshr_b32 s60, s3, 2
    s_lshl_b32 s60, s60, 1
    s_add_u32 s39, s39, s60
    s_cmp_lt_u32 s3, 2
    s_cbranch_scc1 K1_A
    s_cmp_lt_u32 s3, 4
    s_cbranch_scc1 K1_J1
    s_cmp_lt_u32 s3, 6
    s_cbranch_scc1 K1_J2
    s_branch K1_D
    K1_J1:
    s_branch K1_B
    K1_J2:
    s_branch K1_C''')
    st = int(OPT['stag'])
    k1_variant(a, 3, False, 5, 0, 'A'); k1_variant(a, 2, True, 5, 0, 'B'); k1_variant(a, 2, False, 4, st, 'C'); k1_variant(a, 2, True, 4, st, 'D')
    a('K1_EXIT:\ns_endpgm')
    return a.text()
from gen2 import k2
def desc(name, vg, sg=102):
    return f'''.amdhsa_kernel {name}
  .amdhsa_next_free_vgpr {vg}
  .amdhsa_next_free_sgpr {sg}
  .amdhsa_accum_offset {(vg+3)//4*4}
  .amdhsa_group_segment_fixed_size 0
  .amdhsa_kernarg_size 104
  .amdhsa_user_sgpr_count 2
  .amdhsa_user_sgpr_kernarg_segment_ptr 1
  .amdhsa_system_sgpr_workgroup_id_x 1
.end_amdhsa_kernel
'''
hdr = open('cdna_kernels/' + NAME + '.s.ref').read().split('; Override')[0]
k2text, k2lds, k2grid, k2vg = k2(A2, OPT)
out = hdr + f'''; @launch kernel=mha_attn_kernel grid=(256,1,1) block=(512,1,1) lds={LDS1}
; @launch kernel=mha_oproj_kernel grid=({k2grid},1,1) block=(512,1,1) lds={k2lds}
.amdgcn_target "amdgcn-amd-amdhsa--gfx950"
.text
.globl mha_attn_kernel
.p2align 8
.type mha_attn_kernel,@function
mha_attn_kernel:
{k1()}
.globl mha_oproj_kernel
.p2align 8
.type mha_oproj_kernel,@function
mha_oproj_kernel:
{k2text}
.section .rodata,"a"
.p2align 6
{desc('mha_attn_kernel', 256)}
.p2align 6
{desc('mha_oproj_kernel', k2vg)}
'''
open(sys.argv[1], 'w').write(out)
```

```python
from asmlib import *
PBASE = 0x2000000; PSIZE = 18874368
def k2n_variant(a, NQ, tag):
    ACC = lambda qi, tau: (qi*8+tau)*4
    BF = lambda st, qi: 160 + (st*5+qi)*4
    AF = lambda buf, t: 220 + (buf*2+t)*4
    VL16=236; VW=237; VA=238; T=242
    SN = 4 + NQ
    q0 = 0 if NQ == 5 else 5
    def issue(n):
        for j in range(4):
            a(f's_add_u32 m0, s18, {(n%4)*32768+j*1024}\ns_add_u32 s34, s33, {n*32768+j*8192}\nbuffer_load_dwordx4 v{VW}, s[24:27], s34 offen lds')
        for qi in range(NQ):
            a(f's_add_u32 s34, s32, {n*1024+(q0+qi)*131072}\nbuffer_load_dwordx4 {vr(BF(n%3,qi),4)}, v{VL16}, s[20:23], s34 offen')
    def reads(n, qd):
        for t in range(2):
            tau = qd*2 + t
            for H in range(2):
                a(f'ds_read_b64_tr_b16 {vr(AF(qd&1,t)+2*H,2)}, v{VA+(tau&3)} offset:{(n&1)*32768+(tau>>2)*4096+H*2048}')
    a(f'K2_{tag}:')
    issue(0); issue(1); issue(2)
    for n in range(8):
        rem = min(n + 2, 7) - n
        a(f's_waitcnt vmcnt({SN*rem})\ns_barrier')
        if n in (2, 4, 6):
            for t in range(4): a(f'v_add_u32 v{VA+t}, {"0x10000" if n != 4 else "0xffff0000"}, v{VA+t}')
        reads(n, 0); reads(n, 1)
        for qd in range(4):
            a(f's_waitcnt lgkmcnt({4 if qd < 3 else 0})')
            for t in range(2):
                for qi in range(NQ):
                    a(f'v_mfma_f32_16x16x32_bf16 {vr(ACC(qi,qd*2+t),4)}, {vr(AF(qd&1,t),4)}, {vr(BF(n%3,qi),4)}, {vr(ACC(qi,qd*2+t),4)}')
            if qd + 2 < 4: reads(n, qd + 2)
        if n + 3 < 8: issue(n + 3)
    a(f'''s_mul_i32 s9, s19, 36864
    s_add_u32 s9, s9, {q0*4096}
    v_add_u32 v{T}, s9, v{VL16}
    s_nop 7''')
    for r in range(2):
        a('s_barrier')
        for qi in range(NQ):
            for t in range(4): a(f'ds_write_b128 v{T}, {vr(ACC(qi,r*4+t),4)} offset:{(qi*4+t)*1024}')
        a(f'''s_waitcnt lgkmcnt(0)
        s_barrier
        s_mov_b32 s35, s3
        K2T_{tag}{r}:
        s_lshl_b32 s9, s35, 10
        v_add_u32 v{VA}, s9, v{VL16}
        v_add_u32 v{VA+1}, 73728, v{VA}
        ds_read_b128 v[160:163], v{VA}
        ds_read_b128 v[164:167], v{VA} offset:36864
        ds_read_b128 v[168:171], v{VA+1}
        ds_read_b128 v[172:175], v{VA+1} offset:36864
        s_add_u32 s9, s9, s36
        s_add_u32 s9, s9, {r*36864}
        s_waitcnt lgkmcnt(0)''')
        for i in range(4): a(f'v_add_f32 v{160+i}, v{160+i}, v{164+i}\nv_add_f32 v{168+i}, v{168+i}, v{172+i}')
        for i in range(4): a(f'v_add_f32 v{176+i}, v{160+i}, v{168+i}')
        a(f'''buffer_store_dwordx4 v[176:179], v{VL16}, s[28:31], s9 offen
        s_add_u32 s35, s35, 8
        s_cmp_lt_u32 s35, 36
        s_cbranch_scc1 K2T_{tag}{r}''')
    a('s_waitcnt vmcnt(0)\ns_endpgm')
def k2n(A2):
    a = A2()
    VL16=236; VW=237; VA=238; LANE=243
    a(f'''s_cmp_ge_u32 s2, 256
    s_cbranch_scc1 K2_EXIT
    s_and_b32 s6, s2, 1
    s_bfe_u32 s7, s2, 0x20001
    s_bfe_u32 s8, s2, 0x30003
    s_lshr_b32 s5, s2, 6
    s_mul_i32 s9, s6, 40
    s_add_u32 s10, s0, s9
    s_addc_u32 s11, s1, 0
    s_load_dwordx2 s[12:13], s[10:11], 32
    s_load_dwordx2 s[16:17], s[0:1], 96
    v_and_b32 v{LANE}, 63, v0
    v_lshrrev_b32 v1, 6, v0
    v_lshlrev_b32 v{VL16}, 4, v{LANE}
    v_readfirstlane_b32 s3, v1
    v_lshrrev_b32 v1, 3, v{LANE}
    v_and_b32 v2, 7, v{LANE}
    v_lshrrev_b32 v3, 4, v{LANE}
    v_lshlrev_b32 v4, 1, v3
    v_xor_b32 v2, v2, v4
    v_lshlrev_b32 v2, 4, v2
    v_lshl_add_u32 v{VW}, v1, 10, v2
    v_bfe_u32 v1, v{LANE}, 2, 2
    v_lshl_add_u32 v2, v3, 2, v1
    v_lshrrev_b32 v4, 1, v2
    v_and_b32 v4, 3, v4
    v_lshlrev_b32 v4, 1, v4
    v_bfe_u32 v5, v{LANE}, 1, 1
    v_xor_b32 v4, v4, v5
    v_lshlrev_b32 v4, 4, v4
    v_and_b32 v5, 1, v{LANE}
    v_lshl_add_u32 v4, v5, 3, v4
    v_lshl_add_u32 v4, v2, 7, v4
    s_lshr_b32 s19, s3, 1
    s_and_b32 s4, s3, 1
    s_lshl_b32 s18, s19, 13
    v_add_u32 v4, s18, v4
    s_lshl_b32 s9, s4, 12
    s_add_u32 s18, s18, s9''')
    for tau in range(4): a(f'v_xor_b32 v{VA+tau}, {32*tau}, v4')
    for i in range(160): a(f'v_mov_b32 v{i}, 0')
    a(f'''s_waitcnt lgkmcnt(0)
    s_mul_i32 s9, s6, 9437184
    s_add_u32 s20, s16, s9
    s_addc_u32 s21, s17, 0
    s_mov_b32 s22, 9437184
    s_mov_b32 s23, 0x20000
    s_lshl_b32 s9, s5, 8
    s_add_u32 s24, s12, s9
    s_addc_u32 s25, s13, 0
    s_sub_u32 s26, 4194304, s9
    s_mov_b32 s27, 0x20000
    s_add_u32 s28, s16, {PBASE}
    s_addc_u32 s29, s17, 0
    s_mov_b32 s30, {PSIZE}
    s_mov_b32 s31, 0x20000
    s_lshl_b32 s9, s7, 2
    s_add_u32 s9, s9, s19
    s_mul_i32 s32, s8, 1179648
    s_lshl_b32 s10, s9, 13
    s_add_u32 s32, s32, s10
    s_lshl_b32 s33, s9, 18
    s_lshl_b32 s10, s4, 7
    s_add_u32 s33, s33, s10
    s_lshl_b32 s9, s7, 1
    s_add_u32 s9, s9, s6
    s_lshl_b32 s9, s9, 3
    s_add_u32 s9, s9, s8
    s_lshl_b32 s9, s9, 2
    s_add_u32 s9, s9, s5
    s_mul_i32 s36, s9, 73728
    s_cmp_eq_u32 s4, 0
    s_cbranch_scc0 K2_M1''')
    k2n_variant(a, 5, 'M0')
    k2n_variant(a, 4, 'M1')
    a('K2_EXIT:\ns_endpgm')
    return a.text(), 147456, 256, 244
def k3(A2):
    a = A2()
    a(f'''s_cmp_ge_u32 s2, 256
    s_cbranch_scc1 K3_EXIT
    s_load_dwordx2 s[14:15], s[0:1], 80
    s_load_dwordx2 s[16:17], s[0:1], 96
    v_and_b32 v1, 63, v0
    v_lshrrev_b32 v2, 6, v0
    v_readfirstlane_b32 s3, v2
    v_and_b32 v3, 15, v1
    v_lshrrev_b32 v4, 4, v1
    v_lshrrev_b32 v5, 1, v4
    v_and_b32 v6, 1, v4
    v_lshlrev_b32 v7, 4, v3
    v_lshl_add_u32 v7, v6, 9, v7
    v_lshl_add_u32 v7, v5, 10, v7
    v_lshlrev_b32 v8, 11, v3
    v_lshl_add_u32 v8, v4, 4, v8
    s_lshr_b32 s4, s2, 1
    s_and_b32 s5, s2, 1
    s_mul_i32 s6, s4, 36864
    s_lshl_b32 s7, s3, 12
    s_add_u32 s6, s6, s7
    s_lshl_b32 s7, s5, 11
    s_add_u32 s6, s6, s7
    s_lshr_b32 s8, s2, 7
    s_bfe_u32 s9, s2, 0x30004
    s_mul_i32 s9, s9, 9
    s_add_u32 s9, s9, s3
    s_lshl_b32 s9, s9, 15
    s_lshl_b32 s8, s8, 10
    s_add_u32 s9, s9, s8
    s_and_b32 s8, s2, 15
    s_lshl_b32 s8, s8, 6
    s_add_u32 s9, s9, s8
    s_waitcnt lgkmcnt(0)
    s_add_u32 s20, s16, {PBASE}
    s_addc_u32 s21, s17, 0
    s_mov_b32 s22, {PSIZE}
    s_mov_b32 s23, 0x20000
    s_mov_b32 s24, s14
    s_mov_b32 s25, s15
    s_mov_b32 s26, 2359296
    s_mov_b32 s27, 0x20000''')
    for kq in range(4):
        for e in range(2):
            a(f's_add_u32 s10, s6, {kq*(PSIZE//4)}\nbuffer_load_dwordx4 {vr(12+(kq*2+e)*4,4)}, v7, s[20:23], s10 offen offset:{e*256}')
    a('s_waitcnt vmcnt(0)')
    for i in range(8):
        a(f'v_add_f32 v{12+i}, v{12+i}, v{20+i}\nv_add_f32 v{28+i}, v{28+i}, v{36+i}')
    for i in range(8): a(f'v_add_f32 v{12+i}, v{12+i}, v{28+i}')
    a('''v_cvt_pk_bf16_f32 v44, v12, v13
    v_cvt_pk_bf16_f32 v45, v14, v15
    v_cvt_pk_bf16_f32 v46, v16, v17
    v_cvt_pk_bf16_f32 v47, v18, v19
    buffer_store_dwordx4 v[44:47], v8, s[24:27], s9 offen
    s_waitcnt vmcnt(0)
    K3_EXIT:
    s_endpgm''')
    return a.text(), 0, 256, 48
```

```python
import sys
from asmlib import *
NAME = 'concat_heads__mha_block_cached__mha_block_cached__near_ridge'
STG = 98304; CH = 17408; LDS1 = STG + 3*CH
OPT = dict(nt='', prio=0, stamp=0, nold=0, rot=0, hmap=0, stag=1, nox=0, nowq=0, touch=1, early=0, emask=32, ring4=1, cw=0, k2v=2)
for a in sys.argv[2:]:
    k, v = a.split('='); OPT[k] = v
R4 = int(OPT['ring4']); NSLOT = 4 if R4 else 3
NTF = ' nt' if OPT['nt'] == '1' else ''
L0=96; Q0=108; S0=156; NM=180; FR=192; KA=224; VA=228; ONES=236; VE=240; VO=241; L16=242; AQ=243; LANE=244; T0=245; TM=252
STAMP_N = [0]
def stamp(a, i):
    if int(OPT['stamp']):
        a(f's_memtime s[74:75]\ns_waitcnt lgkmcnt(0)\ns_mov_b32 s{92+i}, s74')
def stamp_out(a):
    if int(OPT['stamp']):
        a("""s_memrealtime s[74:75]
        s_waitcnt lgkmcnt(0)
        s_mov_b32 s101, s74
        s_add_u32 s76, s56, 0x4000000
        s_addc_u32 s77, s57, 0
        s_mov_b32 s78, 0x100000
        s_mov_b32 s79, 0x20000
        s_lshl_b32 s60, s2, 3
        s_add_u32 s60, s60, s3
        s_lshl_b32 s60, s60, 6
        v_mov_b32 v1, 0""")
        for i in range(10):
            a(f'v_mov_b32 v2, s{92+i}\nbuffer_store_dword v2, v1, s[76:79], s60 offen offset:{i*4}')
def srd(a, base, nrec):
    a(f's_mov_b32 s{base+2}, {nrec}\ns_mov_b32 s{base+3}, 0x20000')
def k1_dma_pieces():
    P = []
    P.append('s_lshl_b32 s60, s39, 12\ns_add_u32 s61, s28, s60\ns_add_u32 s62, s27, s60\ns_mov_b32 m0, s61\n' +
             f'buffer_load_dwordx4 v{VE}, s[4:7], s62 offen offset:0{NTF} lds')
    for j in range(1, 4):
        P.append(f'buffer_load_dwordx4 v{VE if j%2==0 else VO}, s[4:7], s62 offen offset:{j*1024}{NTF} lds')
    P.append(f's_add_u32 m0, s61, 16384\nbuffer_load_dwordx4 v{VE}, s[8:11], s62 offen offset:0{NTF} lds')
    for j in range(1, 4):
        P.append(f'buffer_load_dwordx4 v{VE if j%2==0 else VO}, s[8:11], s62 offen offset:{j*1024}{NTF} lds')
    return P
def k1_dma_advance(a):
    lab = a.lab()
    nr = 0 if int(OPT['nold']) else 262144
    a(f'''s_add_u32 s28, s28, 32768
    s_cmp_eq_u32 s28, {NSLOT*32768}
    s_cselect_b32 s28, 0, s28
    s_add_u32 s27, s27, 16384
    s_cmp_lg_u32 s27, 262144
    s_cbranch_scc1 {lab}
    s_mov_b32 s27, 0
    s_mov_b32 s4, s42
    s_mov_b32 s5, s43
    s_mov_b32 s8, s46
    s_mov_b32 s9, s47
    s_add_u32 s29, s29, 1
    s_cmp_eq_u32 s29, 1
    s_cselect_b32 s6, {nr}, 0
    s_cselect_b32 s10, {nr}, 0
    {lab}:''')
def k1_dma_kv(a):
    for p in k1_dma_pieces(): a(p)
    k1_dma_advance(a)
def k1_touch(a, br):
    if not int(OPT['touch']): return
    l1 = a.lab(); l2 = a.lab()
    xb = 76 + 8*br; wb = 82 + 8*br
    a(f'''s_lshr_b32 s60, s2, 3
    s_lshl_b32 s60, s60, 3
    s_add_u32 s60, s60, s3
    s_cmp_lt_u32 s60, 64
    s_cbranch_scc0 {l1}
    s_mov_b32 s12, s{wb}
    s_mov_b32 s13, s{wb+1}
    s_mov_b32 s14, 4194304
    s_lshl_b32 s60, s60, 16
    s_and_b32 s61, s2, 7
    s_lshl_b32 s61, s61, 10
    s_add_u32 s60, s60, s61
    v_lshrrev_b32 v253, 3, v{LANE}
    v_and_b32 v254, 7, v{LANE}
    v_lshlrev_b32 v254, 7, v254
    v_lshl_add_u32 v253, v253, 13, v254
    buffer_load_dword v255, v253, s[12:15], s60 offen
    s_branch {l2}
    {l1}:
    s_mov_b32 s12, s{xb}
    s_mov_b32 s13, s{xb+1}
    s_mov_b32 s14, 1179648
    s_sub_u32 s60, s60, 64
    s_lshl_b32 s60, s60, 13
    v_lshlrev_b32 v253, 7, v{LANE}
    buffer_load_dword v255, v253, s[12:15], s60 offen
    {l2}:
    s_mov_b32 s14, {0 if int(OPT['nox']) else 147456}''')
def k1_dma_kv_old(a):
    a('s_lshl_b32 s60, s39, 12\ns_add_u32 s61, s28, s60\ns_add_u32 s60, s27, s60\ns_mov_b32 m0, s61')
    for j in range(4):
        a(f'buffer_load_dwordx4 v{VE if j%2==0 else VO}, s[4:7], s60 offen offset:{j*1024}{NTF} lds')
    a('s_add_u32 m0, s61, 16384')
    for j in range(4):
        a(f'buffer_load_dwordx4 v{VE if j%2==0 else VO}, s[8:11], s60 offen offset:{j*1024}{NTF} lds')
    lab = a.lab()
    a(f'''s_add_u32 s28, s28, 32768
    s_cmp_eq_u32 s28, 98304
    s_cselect_b32 s28, 0, s28
    s_add_u32 s27, s27, 16384
    s_cmp_lg_u32 s27, 262144
    s_cbranch_scc1 {lab}
    s_mov_b32 s27, 0
    s_mov_b32 s4, s42
    s_mov_b32 s5, s43
    s_mov_b32 s8, s46
    s_mov_b32 s9, s47
    s_add_u32 s29, s29, 1
    s_cmp_eq_u32 s29, 1
    s_cselect_b32 s6, {0 if int(OPT['nold']) else 262144}, 0
    s_cselect_b32 s10, {0 if int(OPT['nold']) else 262144}, 0
    {lab}:''')
def k1_dma_proj(a0, c):
    P = []
    class _A:
        def __call__(s, t): P.append(t)
    a = _A()
    k1_dma_proj_(a, c)
    P = [P[0] + '\n' + P[1]] + P[2:]
    if a0 is None: return P
    for p in P: a0(p)
def k1_dma_proj_(a, c):
    base = STG + (c % 3) * CH
    a(f's_add_u32 s37, s73, {c}\ns_and_b32 s37, s37, 15\ns_lshl_b32 s38, s37, 18\ns_lshl_b32 s37, s37, 6')
    a(f's_add_u32 m0, s67, {base}\ns_add_u32 s60, s66, s37\nbuffer_load_dwordx4 v{VE}, s[12:15], s60 offen lds')
    a(f's_add_u32 m0, s67, {base+4096}\ns_add_u32 s60, s60, {4*16384}\nbuffer_load_dwordx4 v{VE}, s[12:15], s60 offen lds')
    a(f's_mov_b32 m0, {base+8192}\ns_add_u32 s60, s37, {8*16384}\ns_mov_b64 exec, s[68:69]\nbuffer_load_dwordx4 v{VE}, s[12:15], s60 offen lds\ns_mov_b64 exec, -1')
    a(f's_add_u32 m0, s71, {base+9216}\ns_add_u32 s60, s70, s38\nbuffer_load_dwordx4 v{VO}, s[16:19], s60 offen lds')
    a(f's_add_u32 m0, s71, {base+9216+1024}\ns_add_u32 s60, s60, {4*8192}\nbuffer_load_dwordx4 v{VO}, s[16:19], s60 offen lds')
def k1_qproj(a, NQ, kvload):
    q0 = 0 if NQ == 5 else 5
    ACC = lambda T, qi: (T*5+qi)*4
    AF = lambda st, T: 40 + st*8 + T*4
    BF = lambda st, qi: 56 + st*20 + qi*4
    for i in range(40): a(f'v_mov_b32 v{i}, 0')
    def reads(c):
        st = c & 1; base = (c % 3) * CH
        for T in range(2):
            for H in range(2):
                a(f'ds_read_b64_tr_b16 {vr(AF(st,T)+2*H,2)}, v{AQ} offset:{base+9216+H*1024+T*8}')
        for qi in range(NQ):
            a(f'ds_read_b128 {vr(BF(st,qi),4)}, v{T0} offset:{base+(q0+qi)*1024}')
    a(f'''v_and_b32 v{T0}, 15, v{LANE}
    v_lshrrev_b32 v{T0+1}, 2, v{T0}
    v_sub_u32 v{T0+1}, 0, v{T0+1}
    v_lshrrev_b32 v{T0+2}, 4, v{LANE}
    v_xor_b32 v{T0+1}, v{T0+1}, v{T0+2}
    v_and_b32 v{T0+1}, 3, v{T0+1}
    v_lshlrev_b32 v{T0+1}, 4, v{T0+1}
    v_lshl_add_u32 v{T0}, v{T0}, 6, v{T0+1}
    v_add_u32 v{T0}, {STG}, v{T0}''')
    if not kvload:
        for c in range(3): k1_dma_proj(a, c)
        a('s_waitcnt vmcnt(10)')
    a('s_barrier')
    reads(0)
    for c in range(16):
        if c < 15:
            if not kvload: a(f's_waitcnt vmcnt({5 if c < 14 else 0})')
            a('s_waitcnt lgkmcnt(0)\ns_barrier')
            reads(c + 1)
        else:
            a('s_waitcnt lgkmcnt(0)')
        st = c & 1
        P = k1_dma_proj(None, c + 3) if (not kvload and c + 3 < 16) else []
        for qi in range(NQ):
            for T in range(2):
                a(f'v_mfma_f32_16x16x32_bf16 {vr(ACC(T,qi),4)}, {vr(AF(st,T),4)}, {vr(BF(st,qi),4)}, {vr(ACC(T,qi),4)}')
            if P: a(P.pop(0))
        for p in P: a(p)
    a('s_barrier')
    a(f's_and_b32 s60, s3, 3\ns_lshl_b32 s60, s60, 10\ns_add_u32 s60, s60, {STG}\nv_add_u32 v{T0}, s60, v{L16}')
    for qi in range(NQ):
        for T in range(2):
            for i in range(4): a(f'v_mul_f32 v{ACC(T,qi)+i}, s65, v{ACC(T,qi)+i}')
        d = 40 + qi*4
        a(f'''v_cvt_pk_bf16_f32 v{d}, v{ACC(0,qi)}, v{ACC(0,qi)+1}
        v_cvt_pk_bf16_f32 v{d+1}, v{ACC(0,qi)+2}, v{ACC(0,qi)+3}
        v_cvt_pk_bf16_f32 v{d+2}, v{ACC(1,qi)}, v{ACC(1,qi)+1}
        v_cvt_pk_bf16_f32 v{d+3}, v{ACC(1,qi)+2}, v{ACC(1,qi)+3}
        ds_write_b128 v{T0}, {vr(d,4)} offset:{(q0+qi)*4096}''')
    a('s_waitcnt lgkmcnt(0)\ns_barrier')
def k1_variant(a, NT, kvload, NQ, stag, tag):
    O = lambda t, qi: (t*NT+qi)*4
    Q = lambda qi, s: Q0 + (qi*4+s)*4
    S = lambda qi, kt: S0 + qi*8 + kt*4
    F = lambda n: FR + n*4
    a(f'K1_{tag}:')
    if kvload:
        a(f'''v_lshrrev_b32 v{T0}, 4, v{LANE}
        v_and_b32 v{T0+1}, 15, v{LANE}
        v_lshlrev_b32 v{T0+2}, 1, v{T0}
        v_xor_b32 v{T0+3}, v{T0+1}, v{T0+2}
        v_lshlrev_b32 v{T0+3}, 4, v{T0+3}
        v_lshl_add_u32 v{VE}, v{T0}, 8, v{T0+3}
        v_xor_b32 v{VO}, 128, v{VE}''')
        for _ in range(3): k1_dma_kv(a)
    else:
        a(f'''v_lshrrev_b32 v{T0}, 4, v{LANE}
        v_and_b32 v{T0+1}, 15, v{LANE}
        v_lshrrev_b32 v{T0+2}, 2, v{LANE}
        v_sub_u32 v{T0+3}, 0, v{T0}
        v_xor_b32 v{T0+3}, v{T0+3}, v{LANE}
        v_and_b32 v{T0+3}, 3, v{T0+3}
        v_lshlrev_b32 v{T0+3}, 4, v{T0+3}
        v_lshl_add_u32 v{VE}, v{T0+2}, 10, v{T0+3}
        v_lshlrev_b32 v{T0+2}, 2, v{T0}
        v_xor_b32 v{T0+3}, v{T0+1}, v{T0+2}
        v_lshlrev_b32 v{T0+3}, 4, v{T0+3}
        v_lshl_add_u32 v{VO}, v{T0}, 13, v{T0+3}
        s_mov_b32 s60, s39
        s_lshl_b32 s66, s60, 14
        s_lshl_b32 s67, s60, 10
        s_lshl_b32 s70, s60, 16
        s_lshl_b32 s71, s60, 11
        s_lshl_b32 s61, s60, 4
        s_mov_b64 s[68:69], 0xffff
        s_lshl_b64 s[68:69], s[68:69], s61''')
    a(f'UNIT_{tag}:')
    def readq():
        a(f's_lshl_b32 s60, s35, 12\ns_add_u32 s60, s60, {STG}\nv_add_u32 v{T0}, s60, v{L16}')
        for qi in range(NT):
            for s in range(4): a(f'ds_read_b128 {vr(Q(qi,s),4)}, v{T0} offset:{(qi*4+s)*1024}')
    a(f'''s_mul_i32 s60, s24, 9437184
    s_add_u32 s20, s56, s60
    s_addc_u32 s21, s57, 0
    s_mov_b32 s58, s24
    s_and_b32 s60, s26, s24
    s_cmp_lg_u32 s60, 0
    s_cbranch_scc1 INIT_{tag}
    QP_{tag}:
    s_cmp_eq_u32 s58, 0
    s_cselect_b32 s12, s48, s50
    s_cselect_b32 s13, s49, s51
    s_cselect_b32 s16, s52, s54
    s_cselect_b32 s17, s53, s55''')
    k1_qproj(a, NQ, kvload)
    if int(OPT['stamp']):
        a(f's_memtime s[74:75]\ns_waitcnt lgkmcnt(0)\ns_cmp_eq_u32 s24, 0\ns_cselect_b32 s94, s74, s94\ns_cselect_b32 s97, s97, s74')
    a(f's_cmp_lg_u32 s58, s24\ns_cbranch_scc1 INIT_{tag}')
    readq()
    a(f'''s_cmp_eq_u32 s26, 0
    s_cbranch_scc1 INIT_{tag}
    s_waitcnt lgkmcnt(0)
    s_barrier
    s_mov_b32 s58, 1
    s_branch QP_{tag}
    INIT_{tag}:''')
    for i in range(32*NT): a(f'v_mov_b32 v{i}, 0')
    for i in range(4*NT): a(f'v_mov_b32 v{L0+i}, 0\nv_mov_b32 v{NM+i}, 0')
    def vread(t):
        for T in range(2): a(f'ds_read_b64_tr_b16 {vr(F(t)+2*T,2)}, v{VA+t} offset:{T*4096}')
    def kread(n): a(f'ds_read_b128 {vr(F(n),4)}, v{KA+(n&3)} offset:{(n>>2)*4096}')
    def pv(dma, kreads):
        for t in range(8):
            if not stag: a(f's_waitcnt lgkmcnt({14-2*t})')
            for qi in range(NT):
                a(f'v_mfma_f32_16x16x32_bf16 {vr(O(t,qi),4)}, {vr(F(t),4)}, {vr(S(qi,0),4)}, {vr(O(t,qi),4)}')
            if t == 0:
                for qi in range(NT):
                    a(f'v_mfma_f32_16x16x32_bf16 {vr(L0+qi*4,4)}, {vr(ONES,4)}, {vr(S(qi,0),4)}, {vr(L0+qi*4,4)}')
            if kreads: kread(t)
            if dma: a(dma[t])
    def body(first):
        dma = k1_dma_pieces() if (kvload and (R4 or not first)) else None
        if kvload: a(f's_waitcnt vmcnt({16 if R4 else 8})')
        a('s_waitcnt lgkmcnt(0)\ns_barrier')
        if stag and not first:
            pv(dma, True)
        else:
            for n in range(8): kread(n)
        for n in range(8):
            kt, s = n >> 2, n & 3
            a(f's_waitcnt lgkmcnt({7-n+2*max(n-1,0) if n>0 else 7})')
            for qi in range(NT):
                c = NM + qi*4 if s == 0 else S(qi,kt)
                a(f'v_mfma_f32_16x16x32_bf16 {vr(S(qi,kt),4)}, {vr(F(n),4)}, {vr(Q(qi,s),4)}, {vr(c,4)}')
            if n >= 1: vread(n-1)
            if dma and (first or not stag): a(dma[n])
        if dma: k1_dma_advance(a)
        a(f"""s_add_u32 s31, s31, 1
        s_cmp_eq_u32 s31, {NSLOT}
        s_cselect_b32 s31, 0, s31
        s_mov_b32 s30, 32768
        s_cselect_b32 s30, {hex((1<<32) - (NSLOT-1)*32768)}, s30""")
        for s in range(4): a(f'v_add_u32 v{KA+s}, s30, v{KA+s}')
        if first:
            vread(7)
            slow(True)
        else:
            vals = [S(qi,0)+i for qi in range(NT) for i in range(4)] + [S(qi,1)+i for qi in range(NT) for i in range(4)]
            a(f'v_max3_f32 v{TM}, v{vals[0]}, v{vals[1]}, v{vals[2]}')
            k = 3
            while k + 1 < len(vals):
                a(f'v_max3_f32 v{TM}, v{TM}, v{vals[k]}, v{vals[k+1]}'); k += 2
            if k < len(vals): a(f'v_max_f32 v{TM}, v{TM}, v{vals[k]}')
            a(f'v_cmp_lt_f32 vcc, s64, v{TM}')
            vread(7)
            a(f's_cbranch_vccnz SLOW_{tag}\nBACK_{tag}:')
        for qi in range(NT):
            for i in range(8): a(f'v_exp_f32 v{S0+qi*8+i}, v{S0+qi*8+i}')
            for i in range(4): a(f'v_cvt_pk_bf16_f32 v{S0+qi*8+i}, v{S0+qi*8+2*i}, v{S0+qi*8+2*i+1}')
        if not stag: pv(None, False)
        for t in range(8): a(f'v_add_u32 v{VA+t}, s30, v{VA+t}')
    def slow(first):
        a(f'v_xor_b32 v{T0}, 16, v{LANE}\nv_lshlrev_b32 v{T0}, 2, v{T0}\nv_xor_b32 v{T0+1}, 32, v{LANE}\nv_lshlrev_b32 v{T0+1}, 2, v{T0+1}')
        for qi in range(NT):
            b = S0 + qi*8; m = T0+2+qi
            a(f"""v_max3_f32 v{m}, v{b}, v{b+1}, v{b+2}
            v_max3_f32 v{m}, v{m}, v{b+3}, v{b+4}
            v_max3_f32 v{m}, v{m}, v{b+5}, v{b+6}
            v_max_f32 v{m}, v{m}, v{b+7}
            ds_bpermute_b32 v{TM}, v{T0}, v{m}
            s_waitcnt lgkmcnt(0)
            v_max_f32 v{m}, v{m}, v{TM}
            ds_bpermute_b32 v{TM}, v{T0+1}, v{m}
            s_waitcnt lgkmcnt(0)
            v_max_f32 v{m}, v{m}, v{TM}""")
            if not first: a(f'v_max_f32 v{m}, 0, v{m}')
            for i in range(8): a(f'v_sub_f32 v{b+i}, v{b+i}, v{m}')
            for i in range(4): a(f'v_sub_f32 v{NM+qi*4+i}, v{NM+qi*4+i}, v{m}')
        if first: return
        for qi in range(NT):
            m = T0+2+qi
            a(f'v_sub_f32 v{m}, 0, v{m}\nv_exp_f32 v{m}, v{m}\ns_nop 0')
            for t in range(8):
                for i in range(4): a(f'v_mul_f32 v{O(t,qi)+i}, v{m}, v{O(t,qi)+i}')
            for i in range(4): a(f'v_mul_f32 v{L0+qi*4+i}, v{m}, v{L0+qi*4+i}')
        a(f's_nop 1\ns_branch BACK_{tag}')
    body(True)
    a(f's_mov_b32 s25, 1\nLOOP_{tag}:')
    body(False)
    a(f"""s_add_u32 s25, s25, 1
    s_cmp_lt_u32 s25, 16
    s_cbranch_scc1 LOOP_{tag}""")
    if stag:
        a('s_waitcnt lgkmcnt(0)')
        pv(None, False)
    if int(OPT['stamp']):
        a(f's_memtime s[74:75]\ns_waitcnt lgkmcnt(0)\ns_cmp_eq_u32 s24, 0\ns_cselect_b32 s95, s74, s95\ns_cselect_b32 s98, s98, s74')
    lq = a.lab()
    a(f's_cmp_gt_u32 s26, s24\ns_cbranch_scc0 {lq}')
    readq()
    a(f's_waitcnt lgkmcnt(0)\n{lq}:')
    a('s_barrier')
    if kvload and not R4: k1_dma_kv(a)
    if int(OPT['touch']):
        lt = a.lab()
        a(f's_cmp_lg_u32 s24, 0\ns_cbranch_scc1 {lt}')
        k1_touch(a, 1)
        a(f'{lt}:')
    SA = T0; PA = T0+1
    a(f'''v_and_b32 v{T0+2}, 15, v{LANE}
    v_lshlrev_b32 v{T0+2}, 2, v{T0+2}
    s_mul_i32 s60, s3, 384
    s_add_u32 s60, s60, {STG+49152}
    v_add_u32 v{SA}, s60, v{T0+2}
    s_mul_i32 s60, s36, 384
    s_add_u32 s60, s60, {STG+49152}
    v_add_u32 v{PA}, s60, v{T0+2}
    s_nop 7''')
    for qi in range(NT):
        a(f'ds_write_b32 v{SA}, v{NM+qi*4} offset:{qi*128}\nds_write_b32 v{SA}, v{L0+qi*4} offset:{qi*128+64}')
    a('s_waitcnt lgkmcnt(0)\ns_barrier')
    for qi in range(NT):
        a(f'ds_read_b32 v{S0+qi*8}, v{PA} offset:{qi*128}\nds_read_b32 v{S0+qi*8+1}, v{PA} offset:{qi*128+64}')
    a('s_waitcnt lgkmcnt(0)')
    for qi in range(NT):
        b = S0 + qi*8
        a(f'''v_min_f32 v{b+2}, v{b}, v{NM+qi*4}
        v_sub_f32 v{b+3}, v{b+2}, v{NM+qi*4}
        v_sub_f32 v{b+4}, v{b+2}, v{b}
        v_exp_f32 v{b+3}, v{b+3}
        v_exp_f32 v{b+4}, v{b+4}
        v_mul_f32 v{b+5}, v{b+3}, v{L0+qi*4}
        v_fma_f32 v{b+5}, v{b+4}, v{b+1}, v{b+5}
        v_rcp_f32 v{b+5}, v{b+5}
        v_mul_f32 v{b+6}, v{b+3}, v{b+5}''')
        for t in range(8):
            for i in range(4): a(f'v_mul_f32 v{O(t,qi)+i}, v{b+6}, v{O(t,qi)+i}')
    a(f'''s_mul_i32 s60, s3, 6144
    s_add_u32 s60, s60, {STG}
    v_add_u32 v{SA}, s60, v{L16}
    s_mul_i32 s60, s36, 6144
    s_add_u32 s60, s60, {STG}
    v_add_u32 v{PA}, s60, v{L16}''')
    lK1 = a.lab(); lE = a.lab()
    a(f's_cmp_lg_u32 s34, 0\ns_cbranch_scc1 {lK1}')
    for kg in range(2):
        if kg == 1: a(f'{lK1}:')
        keep = 4*kg; send = 4*(1-kg)
        for rho in range(2):
            for qi in range(NT):
                for tt in range(2): a(f'ds_write_b128 v{SA}, {vr(O(send+2*rho+tt,qi),4)} offset:{(qi*2+tt)*1024}')
            a('s_waitcnt lgkmcnt(0)\ns_barrier')
            for qi in range(NT):
                for tt in range(2): a(f'ds_read_b128 {vr(FR+(qi*2+tt)*4,4)}, v{PA} offset:{(qi*2+tt)*1024}')
            a('s_waitcnt lgkmcnt(0)\ns_barrier')
            for qi in range(NT):
                for tt in range(2):
                    for i in range(4):
                        r = O(keep+2*rho+tt,qi)+i
                        a(f'v_add_f32 v{r}, v{r}, v{FR+(qi*2+tt)*4+i}')
        a(f'''s_mul_i32 s60, s32, 9
        s_add_u32 s60, s60, s35
        s_lshl_b32 s60, s60, 7
        s_lshl_b32 s61, s33, 2
        s_add_u32 s60, s60, s61
        s_add_u32 s60, s60, {2*kg}
        s_lshl_b32 s60, s60, 10''')
        for qi in range(NT):
            for uu in range(2):
                t0, t1 = keep+2*uu, keep+2*uu+1
                d = FR + (qi*2+uu)*4
                a(f'''v_cvt_pk_bf16_f32 v{d}, v{O(t0,qi)}, v{O(t0,qi)+1}
                v_cvt_pk_bf16_f32 v{d+1}, v{O(t0,qi)+2}, v{O(t0,qi)+3}
                v_cvt_pk_bf16_f32 v{d+2}, v{O(t1,qi)}, v{O(t1,qi)+1}
                v_cvt_pk_bf16_f32 v{d+3}, v{O(t1,qi)+2}, v{O(t1,qi)+3}
                s_add_u32 s61, s60, {qi*131072+uu*1024}
                buffer_store_dwordx4 {vr(d,4)}, v{L16}, s[20:23], s61 offen''')
        if kg == 0: a(f's_branch {lE}')
    a(f'{lE}:')
    if int(OPT['stamp']):
        a(f's_memtime s[74:75]\ns_waitcnt lgkmcnt(0)\ns_cmp_eq_u32 s24, 0\ns_cselect_b32 s96, s74, s96\ns_cselect_b32 s99, s99, s74')
    a(f'''s_add_u32 s24, s24, 1
    s_cmp_lt_u32 s24, 2
    s_cbranch_scc1 UNIT_{tag}
    s_waitcnt vmcnt(0)''')
    stamp_out(a)
    a('s_waitcnt vmcnt(0)\ns_endpgm')
    a(f'SLOW_{tag}:')
    slow(False)
class A2(Asm):
    n = 0
    def lab(s):
        A2.n += 1; return f'L{A2.n}'
def k1():
    a = A2()
    if int(OPT['hmap']) == 0:
        HMAP = 's_and_b32 s33, s2, 7\ns_lshl_b32 s33, s33, 2\ns_bfe_u32 s60, s2, 0x20003\ns_add_u32 s33, s33, s60\ns_lshr_b32 s32, s2, 5'
    else:
        HMAP = 's_and_b32 s33, s2, 3\ns_lshl_b32 s33, s33, 3\ns_bfe_u32 s60, s2, 0x30003\ns_add_u32 s33, s33, s60\ns_bfe_u32 s32, s2, 0x10002\ns_lshl_b32 s32, s32, 2\ns_lshr_b32 s60, s2, 6\ns_add_u32 s32, s32, s60'
    ROT = 's_mov_b32 s73, 0' if not int(OPT['rot']) else 's_lshr_b32 s73, s2, 3\ns_and_b32 s73, s73, 15'
    EARLY = f"s_and_b32 s26, s2, {OPT['emask']}\ns_cselect_b32 s26, 1, 0" if int(OPT['early']) else 's_mov_b32 s26, 0'
    a(f'''s_cmp_ge_u32 s2, 256
    s_cbranch_scc1 K1_EXIT
    s_load_dwordx8 s[76:83], s[0:1], 0
    s_load_dwordx8 s[84:91], s[0:1], 40
    s_load_dwordx2 s[56:57], s[0:1], 96
    v_and_b32 v{LANE}, 63, v0
    v_lshrrev_b32 v1, 6, v0
    v_lshlrev_b32 v{L16}, 4, v{LANE}
    v_readfirstlane_b32 s3, v1
    {HMAP}
    s_lshl_b32 s60, s3, 2
    s_lshr_b32 s35, 0x75375300, s60
    s_and_b32 s35, s35, 15
    s_lshr_b32 s36, 0x43276501, s60
    s_and_b32 s36, s36, 15
    s_lshr_b32 s34, 0xE2, s3
    s_and_b32 s34, s34, 1
    s_mov_b32 s64, 0x41000000
    s_mov_b32 s65, 0x3e0293ee
    s_mov_b32 s24, 0
    {EARLY}
    {ROT}
    s_mov_b32 s27, 0
    s_mov_b32 s28, 0
    s_mov_b32 s29, 0
    s_mov_b32 s31, 0
    s_lshl_b32 s60, s32, 5
    s_add_u32 s60, s60, s33
    s_lshl_b32 s60, s60, 18
    s_mul_i32 s61, s32, 147456
    s_lshl_b32 s62, s33, 8
    s_waitcnt lgkmcnt(0)
    s_add_u32 s40, s78, s60
    s_addc_u32 s41, s79, 0
    s_add_u32 s44, s80, s60
    s_addc_u32 s45, s81, 0
    s_add_u32 s42, s86, s60
    s_addc_u32 s43, s87, 0
    s_add_u32 s46, s88, s60
    s_addc_u32 s47, s89, 0
    s_add_u32 s48, s76, s61
    s_addc_u32 s49, s77, 0
    s_add_u32 s50, s84, s61
    s_addc_u32 s51, s85, 0
    s_add_u32 s52, s82, s62
    s_addc_u32 s53, s83, 0
    s_add_u32 s54, s90, s62
    s_addc_u32 s55, s91, 0
    s_mov_b32 s4, s40
    s_mov_b32 s5, s41
    s_mov_b32 s8, s44
    s_mov_b32 s9, s45''')
    if int(OPT['stamp']):
        a('s_memrealtime s[74:75]\ns_waitcnt lgkmcnt(0)\ns_mov_b32 s92, s74')
        stamp(a, 1)
    nrKV = 0 if int(OPT['nold']) else 262144
    srd(a, 4, nrKV); srd(a, 8, nrKV); srd(a, 12, 0 if int(OPT['nox']) else 147456); srd(a, 16, 0 if int(OPT['nowq']) else 4194304); srd(a, 20, 9437184)
    if int(OPT['cw']):
        a(f'''s_getpc_b64 s[60:61]
        PCREF:
        s_lshl_b32 s62, s3, 13
        v_lshlrev_b32 v252, 7, v{LANE}
        v_add_u32 v252, s62, v252
        v_min_u32 v252, CODE_END-PCREF-4, v252
        v_mov_b32 v253, s61
        v_add_co_u32 v252, vcc, s60, v252
        v_addc_co_u32 v253, vcc, 0, v253, vcc
        global_load_dword v255, v[252:253], off''')
    k1_touch(a, 0)
    if int(OPT['early']): k1_touch(a, 1)
    a(f'''v_and_b32 v1, 15, v{LANE}
    v_lshrrev_b32 v2, 4, v{LANE}
    v_and_b32 v3, 7, v1
    v_lshlrev_b32 v3, 1, v3
    s_lshl_b32 s60, s34, 13
    v_lshlrev_b32 v4, 8, v1
    v_add_u32 v4, s60, v4''')
    for s in range(4):
        a(f'v_add_u32 v5, {4*s}, v2\nv_xor_b32 v5, v5, v3\nv_lshl_add_u32 v{KA+s}, v5, 4, v4')
    a(f'''v_lshrrev_b32 v1, 2, v{LANE}
    v_and_b32 v3, 7, v1
    v_lshlrev_b32 v3, 1, v3
    v_bfe_u32 v5, v{LANE}, 1, 1
    v_xor_b32 v5, v5, v3
    v_lshlrev_b32 v5, 4, v5
    v_and_b32 v6, 1, v{LANE}
    v_lshl_add_u32 v5, v6, 3, v5
    v_lshl_add_u32 v5, v1, 8, v5
    s_add_u32 s60, s60, 16384
    v_add_u32 v5, s60, v5''')
    for t in range(8): a(f'v_xor_b32 v{VA+t}, {32*t}, v5')
    a(f'''v_bfe_u32 v1, v{LANE}, 2, 2
    v_lshl_add_u32 v3, v2, 3, v1
    v_lshlrev_b32 v3, 8, v3
    s_and_b32 s60, s3, 3
    s_lshl_b32 s60, s60, 2
    v_and_b32 v5, 3, v{LANE}
    v_add_u32 v5, s60, v5
    v_lshlrev_b32 v1, 2, v1
    v_xor_b32 v5, v5, v1
    v_lshl_add_u32 v3, v5, 4, v3
    v_add_u32 v{AQ}, {STG}, v3''')
    for i in range(4): a(f'v_mov_b32 v{ONES+i}, 0x3f803f80')
    if int(OPT['prio']):
        a('s_cmp_ge_u32 s3, 4\ns_cbranch_scc0 K1_NOPRIO\ns_setprio 1\nK1_NOPRIO:')
    a('''s_and_b32 s39, s3, 1
    s_lshr_b32 s60, s3, 2
    s_lshl_b32 s60, s60, 1
    s_add_u32 s39, s39, s60
    s_cmp_lt_u32 s3, 2
    s_cbranch_scc1 K1_A
    s_cmp_lt_u32 s3, 4
    s_cbranch_scc1 K1_J1
    s_cmp_lt_u32 s3, 6
    s_cbranch_scc1 K1_J2
    s_branch K1_D
    K1_J1:
    s_branch K1_B
    K1_J2:
    s_branch K1_C''')
    st = int(OPT['stag'])
    k1_variant(a, 3, False, 5, 0, 'A'); k1_variant(a, 2, True, 5, 0, 'B'); k1_variant(a, 2, False, 4, st, 'C'); k1_variant(a, 2, True, 4, st, 'D')
    a('K1_EXIT:\ns_endpgm')
    return a.text()
from gen2 import k2
from gen3 import k2n, k3
def desc(name, vg, sg=102):
    return f'''.amdhsa_kernel {name}
  .amdhsa_next_free_vgpr {vg}
  .amdhsa_next_free_sgpr {sg}
  .amdhsa_accum_offset {(vg+3)//4*4}
  .amdhsa_group_segment_fixed_size 0
  .amdhsa_kernarg_size 104
  .amdhsa_user_sgpr_count 2
  .amdhsa_user_sgpr_kernarg_segment_ptr 1
  .amdhsa_system_sgpr_workgroup_id_x 1
.end_amdhsa_kernel
'''
hdr = open('cdna_kernels/' + NAME + '.s.ref').read().split('; Override')[0]
k2text, k2lds, k2grid, k2vg = k2(A2, OPT) if int(OPT['k2v']) == 1 else k2n(A2)
L3 = T3 = D3 = ''
if int(OPT['k2v']) == 2:
    k3text, k3lds, k3grid, k3vg = k3(A2)
    L3 = f'; @launch kernel=mha_osum_kernel grid=({k3grid},1,1) block=(576,1,1) lds=0\n'
    T3 = f'.globl mha_osum_kernel\n.p2align 8\n.type mha_osum_kernel,@function\nmha_osum_kernel:\n{k3text}\n'
    D3 = f".p2align 6\n{desc('mha_osum_kernel', k3vg)}"
out = hdr + f'''; @launch kernel=mha_attn_kernel grid=(256,1,1) block=(512,1,1) lds={LDS1}
; @launch kernel=mha_oproj_kernel grid=({k2grid},1,1) block=(512,1,1) lds={k2lds}
{L3}.amdgcn_target "amdgcn-amd-amdhsa--gfx950"
.text
.globl mha_attn_kernel
.p2align 8
.type mha_attn_kernel,@function
mha_attn_kernel:
{k1()}
.globl mha_oproj_kernel
.p2align 8
.type mha_oproj_kernel,@function
mha_oproj_kernel:
{k2text}
{T3}CODE_END:
.section .rodata,"a"
.p2align 6
{desc('mha_attn_kernel', 256)}
.p2align 6
{desc('mha_oproj_kernel', k2vg)}
{D3}'''
open(sys.argv[1], 'w').write(out)
```

```python
from asmlib import *
PBASE = 0x2000000; PSIZE = 18874368
def k2n_variant(a, NQ, tag):
    ACC = lambda qi, tau: (qi*8+tau)*4
    BF = lambda st, qi: 160 + (st*5+qi)*4
    AF = lambda buf, t: 220 + (buf*2+t)*4
    VL16=236; VW=237; VA=238; T=242
    SN = 4 + NQ
    q0 = 0 if NQ == 5 else 5
    def issue(n):
        for j in range(4):
            a(f's_add_u32 m0, s18, {(n%4)*32768+j*1024}\ns_add_u32 s34, s33, {n*32768+j*8192}\nbuffer_load_dwordx4 v{VW}, s[24:27], s34 offen lds')
        for qi in range(NQ):
            a(f's_add_u32 s34, s32, {n*1024+(q0+qi)*131072}\nbuffer_load_dwordx4 {vr(BF(n%3,qi),4)}, v{VL16}, s[20:23], s34 offen')
    def reads(n, qd):
        for t in range(2):
            tau = qd*2 + t
            for H in range(2):
                a(f'ds_read_b64_tr_b16 {vr(AF(qd&1,t)+2*H,2)}, v{VA+(tau&3)} offset:{(n&1)*32768+(tau>>2)*4096+H*2048}')
    a(f'K2_{tag}:')
    issue(0); issue(1); issue(2)
    for n in range(8):
        rem = min(n + 2, 7) - n
        a(f's_waitcnt vmcnt({SN*rem})\ns_barrier')
        if n in (2, 4, 6):
            for t in range(4): a(f'v_add_u32 v{VA+t}, {"0x10000" if n != 4 else "0xffff0000"}, v{VA+t}')
        reads(n, 0); reads(n, 1)
        for qd in range(4):
            a(f's_waitcnt lgkmcnt({4 if qd < 3 else 0})')
            for t in range(2):
                for qi in range(NQ):
                    a(f'v_mfma_f32_16x16x32_bf16 {vr(ACC(qi,qd*2+t),4)}, {vr(AF(qd&1,t),4)}, {vr(BF(n%3,qi),4)}, {vr(ACC(qi,qd*2+t),4)}')
            if qd + 2 < 4: reads(n, qd + 2)
        if n + 3 < 8: issue(n + 3)
    a(f'''s_mul_i32 s9, s19, 36864
    s_add_u32 s9, s9, {q0*4096}
    v_add_u32 v{T}, s9, v{VL16}
    s_nop 7''')
    for r in range(2):
        a('s_barrier')
        for qi in range(NQ):
            for t in range(4): a(f'ds_write_b128 v{T}, {vr(ACC(qi,r*4+t),4)} offset:{(qi*4+t)*1024}')
        a(f'''s_waitcnt lgkmcnt(0)
        s_barrier
        s_mov_b32 s35, s3
        K2T_{tag}{r}:
        s_lshl_b32 s9, s35, 10
        v_add_u32 v{VA}, s9, v{VL16}
        v_add_u32 v{VA+1}, 73728, v{VA}
        ds_read_b128 v[160:163], v{VA}
        ds_read_b128 v[164:167], v{VA} offset:36864
        ds_read_b128 v[168:171], v{VA+1}
        ds_read_b128 v[172:175], v{VA+1} offset:36864
        s_add_u32 s9, s9, s36
        s_add_u32 s9, s9, {r*36864}
        s_waitcnt lgkmcnt(0)''')
        for i in range(4): a(f'v_add_f32 v{160+i}, v{160+i}, v{164+i}\nv_add_f32 v{168+i}, v{168+i}, v{172+i}')
        for i in range(4): a(f'v_add_f32 v{176+i}, v{160+i}, v{168+i}')
        a(f'''buffer_store_dwordx4 v[176:179], v{VL16}, s[28:31], s9 offen
        s_add_u32 s35, s35, 8
        s_cmp_lt_u32 s35, 36
        s_cbranch_scc1 K2T_{tag}{r}''')
    a('s_waitcnt vmcnt(0)\ns_endpgm')
def k2n(A2, X=0):
    a = A2()
    VL16=236; VW=237; VA=238; LANE=243
    a(f'''s_cmp_ge_u32 s2, 256
    s_cbranch_scc1 K2_EXIT
    s_and_b32 s6, s2, 1
    s_bfe_u32 s7, s2, 0x20001
    s_bfe_u32 s8, s2, 0x30003
    s_lshr_b32 s5, s2, 6
    s_mul_i32 s9, s6, 40
    s_add_u32 s10, s0, s9
    s_addc_u32 s11, s1, 0
    s_load_dwordx2 s[12:13], s[10:11], 32
    s_load_dwordx2 s[16:17], s[0:1], 96
    v_and_b32 v{LANE}, 63, v0
    v_lshrrev_b32 v1, 6, v0
    v_lshlrev_b32 v{VL16}, 4, v{LANE}
    v_readfirstlane_b32 s3, v1
    v_lshrrev_b32 v1, 3, v{LANE}
    v_and_b32 v2, 7, v{LANE}
    v_lshrrev_b32 v3, 4, v{LANE}
    v_lshlrev_b32 v4, 1, v3
    v_xor_b32 v2, v2, v4
    v_lshlrev_b32 v2, 4, v2
    v_lshl_add_u32 v{VW}, v1, 10, v2
    v_bfe_u32 v1, v{LANE}, 2, 2
    v_lshl_add_u32 v2, v3, 2, v1
    v_lshrrev_b32 v4, 1, v2
    v_and_b32 v4, 3, v4
    v_lshlrev_b32 v4, 1, v4
    v_bfe_u32 v5, v{LANE}, 1, 1
    v_xor_b32 v4, v4, v5
    v_lshlrev_b32 v4, 4, v4
    v_and_b32 v5, 1, v{LANE}
    v_lshl_add_u32 v4, v5, 3, v4
    v_lshl_add_u32 v4, v2, 7, v4
    s_lshr_b32 s19, s3, 1
    s_and_b32 s4, s3, 1
    s_lshl_b32 s18, s19, 13
    v_add_u32 v4, s18, v4
    s_lshl_b32 s9, s4, 12
    s_add_u32 s18, s18, s9''')
    for tau in range(4): a(f'v_xor_b32 v{VA+tau}, {32*tau}, v4')
    for i in range(160): a(f'v_mov_b32 v{i}, 0')
    a(f'''s_waitcnt lgkmcnt(0)
    s_mul_i32 s9, s6, 9437184
    s_add_u32 s20, s16, s9
    s_addc_u32 s21, s17, 0
    s_mov_b32 s22, {0 if X&2 else 9437184}
    s_mov_b32 s23, 0x20000
    s_lshl_b32 s9, s5, 8
    s_add_u32 s24, s12, s9
    s_addc_u32 s25, s13, 0
    s_sub_u32 s26, 4194304, s9
    {'s_mov_b32 s26, 0' if X&4 else ''}
    s_mov_b32 s27, 0x20000
    s_add_u32 s28, s16, {PBASE}
    s_addc_u32 s29, s17, 0
    s_mov_b32 s30, {0 if X&1 else PSIZE}
    s_mov_b32 s31, 0x20000
    s_lshl_b32 s9, s7, 2
    s_add_u32 s9, s9, s19
    s_mul_i32 s32, s8, 1179648
    s_lshl_b32 s10, s9, 13
    s_add_u32 s32, s32, s10
    s_lshl_b32 s33, s9, 18
    s_lshl_b32 s10, s4, 7
    s_add_u32 s33, s33, s10
    s_lshl_b32 s9, s7, 1
    s_add_u32 s9, s9, s6
    s_lshl_b32 s9, s9, 3
    s_add_u32 s9, s9, s8
    s_lshl_b32 s9, s9, 2
    s_add_u32 s9, s9, s5
    s_mul_i32 s36, s9, 73728
    s_cmp_eq_u32 s4, 0
    s_cbranch_scc0 K2_M1''')
    k2n_variant(a, 5, 'M0')
    k2n_variant(a, 4, 'M1')
    a('K2_EXIT:\ns_endpgm')
    return a.text(), 147456, 256, 244
def k3(A2):
    a = A2()
    a(f'''s_cmp_ge_u32 s2, 256
    s_cbranch_scc1 K3_EXIT
    s_load_dwordx2 s[14:15], s[0:1], 80
    s_load_dwordx2 s[16:17], s[0:1], 96
    v_and_b32 v1, 63, v0
    v_lshrrev_b32 v2, 6, v0
    v_readfirstlane_b32 s3, v2
    v_and_b32 v3, 15, v1
    v_lshrrev_b32 v4, 4, v1
    v_lshrrev_b32 v5, 1, v4
    v_and_b32 v6, 1, v4
    v_lshlrev_b32 v7, 4, v3
    v_lshl_add_u32 v7, v6, 9, v7
    v_lshl_add_u32 v7, v5, 10, v7
    v_lshlrev_b32 v8, 11, v3
    v_lshl_add_u32 v8, v4, 4, v8
    s_lshr_b32 s4, s2, 1
    s_and_b32 s5, s2, 1
    s_mul_i32 s6, s4, 36864
    s_lshl_b32 s7, s3, 12
    s_add_u32 s6, s6, s7
    s_lshl_b32 s7, s5, 11
    s_add_u32 s6, s6, s7
    s_lshr_b32 s8, s2, 7
    s_bfe_u32 s9, s2, 0x30004
    s_mul_i32 s9, s9, 9
    s_add_u32 s9, s9, s3
    s_lshl_b32 s9, s9, 15
    s_lshl_b32 s8, s8, 10
    s_add_u32 s9, s9, s8
    s_and_b32 s8, s2, 15
    s_lshl_b32 s8, s8, 6
    s_add_u32 s9, s9, s8
    s_waitcnt lgkmcnt(0)
    s_add_u32 s20, s16, {PBASE}
    s_addc_u32 s21, s17, 0
    s_mov_b32 s22, {PSIZE}
    s_mov_b32 s23, 0x20000
    s_mov_b32 s24, s14
    s_mov_b32 s25, s15
    s_mov_b32 s26, 2359296
    s_mov_b32 s27, 0x20000''')
    for kq in range(4):
        for e in range(2):
            a(f's_add_u32 s10, s6, {kq*(PSIZE//4)}\nbuffer_load_dwordx4 {vr(12+(kq*2+e)*4,4)}, v7, s[20:23], s10 offen offset:{e*256}')
    a('s_waitcnt vmcnt(0)')
    for i in range(8):
        a(f'v_add_f32 v{12+i}, v{12+i}, v{20+i}\nv_add_f32 v{28+i}, v{28+i}, v{36+i}')
    for i in range(8): a(f'v_add_f32 v{12+i}, v{12+i}, v{28+i}')
    a('''v_cvt_pk_bf16_f32 v44, v12, v13
    v_cvt_pk_bf16_f32 v45, v14, v15
    v_cvt_pk_bf16_f32 v46, v16, v17
    v_cvt_pk_bf16_f32 v47, v18, v19
    buffer_store_dwordx4 v[44:47], v8, s[24:27], s9 offen
    s_waitcnt vmcnt(0)
    K3_EXIT:
    s_endpgm''')
    return a.text(), 0, 256, 48
```

```python
import sys
from asmlib import *
NAME = 'concat_heads__mha_block_cached__mha_block_cached__near_ridge'
STG = 98304; CH = 17408; LDS1 = STG + 3*CH
OPT = dict(nt='', prio=0, stamp=0, nold=0, rot=0, hmap=0, stag=1, nox=0, nowq=0, touch=1, early=0, emask=32, ring4=1, cw=0, k2v=1, wot=1, kvc=1)
for a in sys.argv[2:]:
    k, v = a.split('='); OPT[k] = v
R4 = int(OPT['ring4']); NSLOT = 4 if R4 else 3
NTF = ' nt' if OPT['nt'] == '1' else ''
L0=96; Q0=108; S0=156; NM=180; FR=192; KA=224; VA=228; ONES=236; VE=240; VO=241; L16=242; AQ=243; LANE=244; T0=245; TM=252
STAMP_N = [0]
def stamp(a, i):
    if int(OPT['stamp']):
        a(f's_memtime s[74:75]\ns_waitcnt lgkmcnt(0)\ns_mov_b32 s{92+i}, s74')
def stamp_out(a):
    if int(OPT['stamp']):
        a("""s_memrealtime s[74:75]
        s_waitcnt lgkmcnt(0)
        s_mov_b32 s101, s74
        s_add_u32 s76, s56, 0x4000000
        s_addc_u32 s77, s57, 0
        s_mov_b32 s78, 0x100000
        s_mov_b32 s79, 0x20000
        s_lshl_b32 s60, s2, 3
        s_add_u32 s60, s60, s3
        s_lshl_b32 s60, s60, 6
        v_mov_b32 v1, 0""")
        for i in range(10):
            a(f'v_mov_b32 v2, s{92+i}\nbuffer_store_dword v2, v1, s[76:79], s60 offen offset:{i*4}')
def srd(a, base, nrec):
    a(f's_mov_b32 s{base+2}, {nrec}\ns_mov_b32 s{base+3}, 0x20000')
def k1_dma_pieces():
    P = []
    P.append('s_lshl_b32 s60, s39, 12\ns_add_u32 s61, s28, s60\ns_add_u32 s62, s27, s60\ns_mov_b32 m0, s61\n' +
             f'buffer_load_dwordx4 v{VE}, s[4:7], s62 offen offset:0{NTF} lds')
    for j in range(1, 4):
        P.append(f'buffer_load_dwordx4 v{VE if j%2==0 else VO}, s[4:7], s62 offen offset:{j*1024}{NTF} lds')
    P.append(f's_add_u32 m0, s61, 16384\nbuffer_load_dwordx4 v{VE}, s[8:11], s62 offen offset:0{NTF} lds')
    for j in range(1, 4):
        P.append(f'buffer_load_dwordx4 v{VE if j%2==0 else VO}, s[8:11], s62 offen offset:{j*1024}{NTF} lds')
    return P
def k1_dma_advance(a):
    lab = a.lab()
    nr = 0 if int(OPT['nold']) else 262144
    a(f'''s_add_u32 s28, s28, 32768
    s_cmp_eq_u32 s28, {NSLOT*32768}
    s_cselect_b32 s28, 0, s28
    s_add_u32 s27, s27, 16384
    s_cmp_lg_u32 s27, 262144
    s_cbranch_scc1 {lab}
    s_mov_b32 s27, 0
    s_mov_b32 s4, s42
    s_mov_b32 s5, s43
    s_mov_b32 s8, s46
    s_mov_b32 s9, s47
    s_add_u32 s29, s29, 1
    s_cmp_eq_u32 s29, 1
    s_cselect_b32 s6, {nr}, 0
    s_cselect_b32 s10, {nr}, 0
    {lab}:''')
def k1_dma_kv(a):
    for p in k1_dma_pieces(): a(p)
    k1_dma_advance(a)
def k1_touch(a, br):
    if not int(OPT['touch']): return
    l1 = a.lab(); l2 = a.lab()
    xb = 76 + 8*br; wb = 82 + 8*br
    a(f'''s_lshr_b32 s60, s2, 3
    s_lshl_b32 s60, s60, 3
    s_add_u32 s60, s60, s3
    s_cmp_lt_u32 s60, 64
    s_cbranch_scc0 {l1}
    s_mov_b32 s12, s{wb}
    s_mov_b32 s13, s{wb+1}
    s_mov_b32 s14, 4194304
    s_lshl_b32 s60, s60, 16
    s_and_b32 s61, s2, 7
    s_lshl_b32 s61, s61, 10
    s_add_u32 s60, s60, s61
    v_lshrrev_b32 v253, 3, v{LANE}
    v_and_b32 v254, 7, v{LANE}
    v_lshlrev_b32 v254, 7, v254
    v_lshl_add_u32 v253, v253, 13, v254
    buffer_load_dword v255, v253, s[12:15], s60 offen
    s_branch {l2}
    {l1}:
    s_mov_b32 s12, s{xb}
    s_mov_b32 s13, s{xb+1}
    s_mov_b32 s14, 1179648
    s_sub_u32 s60, s60, 64
    s_lshl_b32 s60, s60, 13
    v_lshlrev_b32 v253, 7, v{LANE}
    buffer_load_dword v255, v253, s[12:15], s60 offen
    {l2}:
    s_mov_b32 s14, {0 if int(OPT['nox']) else 147456}''')
def k1_dma_kv_old(a):
    a('s_lshl_b32 s60, s39, 12\ns_add_u32 s61, s28, s60\ns_add_u32 s60, s27, s60\ns_mov_b32 m0, s61')
    for j in range(4):
        a(f'buffer_load_dwordx4 v{VE if j%2==0 else VO}, s[4:7], s60 offen offset:{j*1024}{NTF} lds')
    a('s_add_u32 m0, s61, 16384')
    for j in range(4):
        a(f'buffer_load_dwordx4 v{VE if j%2==0 else VO}, s[8:11], s60 offen offset:{j*1024}{NTF} lds')
    lab = a.lab()
    a(f'''s_add_u32 s28, s28, 32768
    s_cmp_eq_u32 s28, 98304
    s_cselect_b32 s28, 0, s28
    s_add_u32 s27, s27, 16384
    s_cmp_lg_u32 s27, 262144
    s_cbranch_scc1 {lab}
    s_mov_b32 s27, 0
    s_mov_b32 s4, s42
    s_mov_b32 s5, s43
    s_mov_b32 s8, s46
    s_mov_b32 s9, s47
    s_add_u32 s29, s29, 1
    s_cmp_eq_u32 s29, 1
    s_cselect_b32 s6, {0 if int(OPT['nold']) else 262144}, 0
    s_cselect_b32 s10, {0 if int(OPT['nold']) else 262144}, 0
    {lab}:''')
def k1_dma_proj(a0, c):
    P = []
    class _A:
        def __call__(s, t): P.append(t)
    a = _A()
    k1_dma_proj_(a, c)
    P = [P[0] + '\n' + P[1]] + P[2:]
    if a0 is None: return P
    for p in P: a0(p)
def k1_dma_proj_(a, c):
    base = STG + (c % 3) * CH
    a(f's_add_u32 s37, s73, {c}\ns_and_b32 s37, s37, 15\ns_lshl_b32 s38, s37, 18\ns_lshl_b32 s37, s37, 6')
    a(f's_add_u32 m0, s67, {base}\ns_add_u32 s60, s66, s37\nbuffer_load_dwordx4 v{VE}, s[12:15], s60 offen lds')
    a(f's_add_u32 m0, s67, {base+4096}\ns_add_u32 s60, s60, {4*16384}\nbuffer_load_dwordx4 v{VE}, s[12:15], s60 offen lds')
    a(f's_mov_b32 m0, {base+8192}\ns_add_u32 s60, s37, {8*16384}\ns_mov_b64 exec, s[68:69]\nbuffer_load_dwordx4 v{VE}, s[12:15], s60 offen lds\ns_mov_b64 exec, -1')
    a(f's_add_u32 m0, s71, {base+9216}\ns_add_u32 s60, s70, s38\nbuffer_load_dwordx4 v{VO}, s[16:19], s60 offen lds')
    a(f's_add_u32 m0, s71, {base+9216+1024}\ns_add_u32 s60, s60, {4*8192}\nbuffer_load_dwordx4 v{VO}, s[16:19], s60 offen lds')
def k1_qproj(a, NQ, kvload):
    q0 = 0 if NQ == 5 else 5
    ACC = lambda T, qi: (T*5+qi)*4
    AF = lambda st, T: 40 + st*8 + T*4
    BF = lambda st, qi: 56 + st*20 + qi*4
    for i in range(40): a(f'v_mov_b32 v{i}, 0')
    def reads(c):
        st = c & 1; base = (c % 3) * CH
        for T in range(2):
            for H in range(2):
                a(f'ds_read_b64_tr_b16 {vr(AF(st,T)+2*H,2)}, v{AQ} offset:{base+9216+H*1024+T*8}')
        for qi in range(NQ):
            a(f'ds_read_b128 {vr(BF(st,qi),4)}, v{T0} offset:{base+(q0+qi)*1024}')
    a(f'''v_and_b32 v{T0}, 15, v{LANE}
    v_lshrrev_b32 v{T0+1}, 2, v{T0}
    v_sub_u32 v{T0+1}, 0, v{T0+1}
    v_lshrrev_b32 v{T0+2}, 4, v{LANE}
    v_xor_b32 v{T0+1}, v{T0+1}, v{T0+2}
    v_and_b32 v{T0+1}, 3, v{T0+1}
    v_lshlrev_b32 v{T0+1}, 4, v{T0+1}
    v_lshl_add_u32 v{T0}, v{T0}, 6, v{T0+1}
    v_add_u32 v{T0}, {STG}, v{T0}''')
    if not kvload:
        for c in range(3): k1_dma_proj(a, c)
        a('s_waitcnt vmcnt(10)')
    a('s_barrier')
    reads(0)
    for c in range(16):
        if c < 15:
            if not kvload: a(f's_waitcnt vmcnt({5 if c < 14 else 0})')
            a('s_waitcnt lgkmcnt(0)\ns_barrier')
            reads(c + 1)
        else:
            a('s_waitcnt lgkmcnt(0)')
        st = c & 1
        P = k1_dma_proj(None, c + 3) if (not kvload and c + 3 < 16) else []
        if kvload and c == int(OPT['kvc']):
            lk = a.lab()
            a(f's_cmp_eq_u32 s24, 0\ns_cbranch_scc0 {lk}')
            for _ in range(3): k1_dma_kv(a)
            a(f'{lk}:')
        for qi in range(NQ):
            for T in range(2):
                a(f'v_mfma_f32_16x16x32_bf16 {vr(ACC(T,qi),4)}, {vr(AF(st,T),4)}, {vr(BF(st,qi),4)}, {vr(ACC(T,qi),4)}')
            if P: a(P.pop(0))
        for p in P: a(p)
    a('s_barrier')
    a(f's_and_b32 s60, s3, 3\ns_lshl_b32 s60, s60, 10\ns_add_u32 s60, s60, {STG}\nv_add_u32 v{T0}, s60, v{L16}')
    for qi in range(NQ):
        for T in range(2):
            for i in range(4): a(f'v_mul_f32 v{ACC(T,qi)+i}, s65, v{ACC(T,qi)+i}')
        d = 40 + qi*4
        a(f'''v_cvt_pk_bf16_f32 v{d}, v{ACC(0,qi)}, v{ACC(0,qi)+1}
        v_cvt_pk_bf16_f32 v{d+1}, v{ACC(0,qi)+2}, v{ACC(0,qi)+3}
        v_cvt_pk_bf16_f32 v{d+2}, v{ACC(1,qi)}, v{ACC(1,qi)+1}
        v_cvt_pk_bf16_f32 v{d+3}, v{ACC(1,qi)+2}, v{ACC(1,qi)+3}
        ds_write_b128 v{T0}, {vr(d,4)} offset:{(q0+qi)*4096}''')
    a('s_waitcnt lgkmcnt(0)\ns_barrier')
def k1_variant(a, NT, kvload, NQ, stag, tag):
    O = lambda t, qi: (t*NT+qi)*4
    Q = lambda qi, s: Q0 + (qi*4+s)*4
    S = lambda qi, kt: S0 + qi*8 + kt*4
    F = lambda n: FR + n*4
    a(f'K1_{tag}:')
    if kvload:
        a(f'''v_lshrrev_b32 v{T0}, 4, v{LANE}
        v_and_b32 v{T0+1}, 15, v{LANE}
        v_lshlrev_b32 v{T0+2}, 1, v{T0}
        v_xor_b32 v{T0+3}, v{T0+1}, v{T0+2}
        v_lshlrev_b32 v{T0+3}, 4, v{T0+3}
        v_lshl_add_u32 v{VE}, v{T0}, 8, v{T0+3}
        v_xor_b32 v{VO}, 128, v{VE}''')
        if int(OPT['kvc']) < 0:
            for _ in range(3): k1_dma_kv(a)
    else:
        a(f'''v_lshrrev_b32 v{T0}, 4, v{LANE}
        v_and_b32 v{T0+1}, 15, v{LANE}
        v_lshrrev_b32 v{T0+2}, 2, v{LANE}
        v_sub_u32 v{T0+3}, 0, v{T0}
        v_xor_b32 v{T0+3}, v{T0+3}, v{LANE}
        v_and_b32 v{T0+3}, 3, v{T0+3}
        v_lshlrev_b32 v{T0+3}, 4, v{T0+3}
        v_lshl_add_u32 v{VE}, v{T0+2}, 10, v{T0+3}
        v_lshlrev_b32 v{T0+2}, 2, v{T0}
        v_xor_b32 v{T0+3}, v{T0+1}, v{T0+2}
        v_lshlrev_b32 v{T0+3}, 4, v{T0+3}
        v_lshl_add_u32 v{VO}, v{T0}, 13, v{T0+3}
        s_mov_b32 s60, s39
        s_lshl_b32 s66, s60, 14
        s_lshl_b32 s67, s60, 10
        s_lshl_b32 s70, s60, 16
        s_lshl_b32 s71, s60, 11
        s_lshl_b32 s61, s60, 4
        s_mov_b64 s[68:69], 0xffff
        s_lshl_b64 s[68:69], s[68:69], s61''')
    a(f'UNIT_{tag}:')
    def readq():
        a(f's_lshl_b32 s60, s35, 12\ns_add_u32 s60, s60, {STG}\nv_add_u32 v{T0}, s60, v{L16}')
        for qi in range(NT):
            for s in range(4): a(f'ds_read_b128 {vr(Q(qi,s),4)}, v{T0} offset:{(qi*4+s)*1024}')
    a(f'''s_mul_i32 s60, s24, 9437184
    s_add_u32 s20, s56, s60
    s_addc_u32 s21, s57, 0
    s_mov_b32 s58, s24
    s_and_b32 s60, s26, s24
    s_cmp_lg_u32 s60, 0
    s_cbranch_scc1 INIT_{tag}
    QP_{tag}:
    s_cmp_eq_u32 s58, 0
    s_cselect_b32 s12, s48, s50
    s_cselect_b32 s13, s49, s51
    s_cselect_b32 s16, s52, s54
    s_cselect_b32 s17, s53, s55''')
    k1_qproj(a, NQ, kvload)
    if int(OPT['stamp']):
        a(f's_memtime s[74:75]\ns_waitcnt lgkmcnt(0)\ns_cmp_eq_u32 s24, 0\ns_cselect_b32 s94, s74, s94\ns_cselect_b32 s97, s97, s74')
    a(f's_cmp_lg_u32 s58, s24\ns_cbranch_scc1 INIT_{tag}')
    readq()
    a(f'''s_cmp_eq_u32 s26, 0
    s_cbranch_scc1 INIT_{tag}
    s_waitcnt lgkmcnt(0)
    s_barrier
    s_mov_b32 s58, 1
    s_branch QP_{tag}
    INIT_{tag}:''')
    for i in range(32*NT): a(f'v_mov_b32 v{i}, 0')
    for i in range(4*NT): a(f'v_mov_b32 v{L0+i}, 0\nv_mov_b32 v{NM+i}, 0')
    def vread(t):
        for T in range(2): a(f'ds_read_b64_tr_b16 {vr(F(t)+2*T,2)}, v{VA+t} offset:{T*4096}')
    def kread(n): a(f'ds_read_b128 {vr(F(n),4)}, v{KA+(n&3)} offset:{(n>>2)*4096}')
    def pv(dma, kreads):
        for t in range(8):
            if not stag: a(f's_waitcnt lgkmcnt({14-2*t})')
            for qi in range(NT):
                a(f'v_mfma_f32_16x16x32_bf16 {vr(O(t,qi),4)}, {vr(F(t),4)}, {vr(S(qi,0),4)}, {vr(O(t,qi),4)}')
            if t == 0:
                for qi in range(NT):
                    a(f'v_mfma_f32_16x16x32_bf16 {vr(L0+qi*4,4)}, {vr(ONES,4)}, {vr(S(qi,0),4)}, {vr(L0+qi*4,4)}')
            if kreads: kread(t)
            if dma: a(dma[t])
    def body(first):
        dma = k1_dma_pieces() if (kvload and (R4 or not first)) else None
        if kvload: a(f's_waitcnt vmcnt({16 if R4 else 8})')
        a('s_waitcnt lgkmcnt(0)\ns_barrier')
        if stag and not first:
            pv(dma, True)
        else:
            for n in range(8): kread(n)
        for n in range(8):
            kt, s = n >> 2, n & 3
            a(f's_waitcnt lgkmcnt({7-n+2*max(n-1,0) if n>0 else 7})')
            for qi in range(NT):
                c = NM + qi*4 if s == 0 else S(qi,kt)
                a(f'v_mfma_f32_16x16x32_bf16 {vr(S(qi,kt),4)}, {vr(F(n),4)}, {vr(Q(qi,s),4)}, {vr(c,4)}')
            if n >= 1: vread(n-1)
            if dma and (first or not stag): a(dma[n])
        if dma: k1_dma_advance(a)
        a(f"""s_add_u32 s31, s31, 1
        s_cmp_eq_u32 s31, {NSLOT}
        s_cselect_b32 s31, 0, s31
        s_mov_b32 s30, 32768
        s_cselect_b32 s30, {hex((1<<32) - (NSLOT-1)*32768)}, s30""")
        for s in range(4): a(f'v_add_u32 v{KA+s}, s30, v{KA+s}')
        if first:
            vread(7)
            slow(True)
        else:
            vals = [S(qi,0)+i for qi in range(NT) for i in range(4)] + [S(qi,1)+i for qi in range(NT) for i in range(4)]
            a(f'v_max3_f32 v{TM}, v{vals[0]}, v{vals[1]}, v{vals[2]}')
            k = 3
            while k + 1 < len(vals):
                a(f'v_max3_f32 v{TM}, v{TM}, v{vals[k]}, v{vals[k+1]}'); k += 2
            if k < len(vals): a(f'v_max_f32 v{TM}, v{TM}, v{vals[k]}')
            a(f'v_cmp_lt_f32 vcc, s64, v{TM}')
            vread(7)
            a(f's_cbranch_vccnz SLOW_{tag}\nBACK_{tag}:')
        for qi in range(NT):
            for i in range(8): a(f'v_exp_f32 v{S0+qi*8+i}, v{S0+qi*8+i}')
            for i in range(4): a(f'v_cvt_pk_bf16_f32 v{S0+qi*8+i}, v{S0+qi*8+2*i}, v{S0+qi*8+2*i+1}')
        if not stag: pv(None, False)
        for t in range(8): a(f'v_add_u32 v{VA+t}, s30, v{VA+t}')
    def slow(first):
        a(f'v_xor_b32 v{T0}, 16, v{LANE}\nv_lshlrev_b32 v{T0}, 2, v{T0}\nv_xor_b32 v{T0+1}, 32, v{LANE}\nv_lshlrev_b32 v{T0+1}, 2, v{T0+1}')
        for qi in range(NT):
            b = S0 + qi*8; m = T0+2+qi
            a(f"""v_max3_f32 v{m}, v{b}, v{b+1}, v{b+2}
            v_max3_f32 v{m}, v{m}, v{b+3}, v{b+4}
            v_max3_f32 v{m}, v{m}, v{b+5}, v{b+6}
            v_max_f32 v{m}, v{m}, v{b+7}
            ds_bpermute_b32 v{TM}, v{T0}, v{m}
            s_waitcnt lgkmcnt(0)
            v_max_f32 v{m}, v{m}, v{TM}
            ds_bpermute_b32 v{TM}, v{T0+1}, v{m}
            s_waitcnt lgkmcnt(0)
            v_max_f32 v{m}, v{m}, v{TM}""")
            if not first: a(f'v_max_f32 v{m}, 0, v{m}')
            for i in range(8): a(f'v_sub_f32 v{b+i}, v{b+i}, v{m}')
            for i in range(4): a(f'v_sub_f32 v{NM+qi*4+i}, v{NM+qi*4+i}, v{m}')
        if first: return
        for qi in range(NT):
            m = T0+2+qi
            a(f'v_sub_f32 v{m}, 0, v{m}\nv_exp_f32 v{m}, v{m}\ns_nop 0')
            for t in range(8):
                for i in range(4): a(f'v_mul_f32 v{O(t,qi)+i}, v{m}, v{O(t,qi)+i}')
            for i in range(4): a(f'v_mul_f32 v{L0+qi*4+i}, v{m}, v{L0+qi*4+i}')
        a(f's_nop 1\ns_branch BACK_{tag}')
    body(True)
    a(f's_mov_b32 s25, 1\nLOOP_{tag}:')
    body(False)
    a(f"""s_add_u32 s25, s25, 1
    s_cmp_lt_u32 s25, 16
    s_cbranch_scc1 LOOP_{tag}""")
    if stag:
        a('s_waitcnt lgkmcnt(0)')
        pv(None, False)
    if int(OPT['stamp']):
        a(f's_memtime s[74:75]\ns_waitcnt lgkmcnt(0)\ns_cmp_eq_u32 s24, 0\ns_cselect_b32 s95, s74, s95\ns_cselect_b32 s98, s98, s74')
    lq = a.lab()
    a(f's_cmp_gt_u32 s26, s24\ns_cbranch_scc0 {lq}')
    readq()
    a(f's_waitcnt lgkmcnt(0)\n{lq}:')
    a('s_barrier')
    if kvload and not R4: k1_dma_kv(a)
    if int(OPT['touch']):
        lt = a.lab()
        a(f's_cmp_lg_u32 s24, 0\ns_cbranch_scc1 {lt}')
        k1_touch(a, 1)
        a(f'{lt}:')
    if int(OPT['wot']):
        lw = a.lab()
        a(f'''s_cmp_eq_u32 s24, 0
        s_cbranch_scc1 {lw}
        s_and_b32 s60, s2, 1
        s_mul_i32 s60, s60, 40
        s_add_u32 s62, s0, s60
        s_addc_u32 s63, s1, 0
        s_load_dwordx2 s[12:13], s[62:63], 32
        s_lshr_b32 s60, s2, 3
        s_lshl_b32 s60, s60, 3
        s_add_u32 s60, s60, s3
        s_lshl_b32 s60, s60, 14
        s_bfe_u32 s61, s2, 0x10001
        s_lshl_b32 s61, s61, 9
        s_add_u32 s60, s60, s61
        v_lshrrev_b32 v253, 2, v{LANE}
        v_and_b32 v254, 3, v{LANE}
        v_lshlrev_b32 v254, 7, v254
        v_lshl_add_u32 v253, v253, 10, v254
        s_mov_b32 s14, 4194304
        s_waitcnt lgkmcnt(0)
        buffer_load_dword v255, v253, s[12:15], s60 offen
        {lw}:''')
    SA = T0; PA = T0+1
    a(f'''v_and_b32 v{T0+2}, 15, v{LANE}
    v_lshlrev_b32 v{T0+2}, 2, v{T0+2}
    s_mul_i32 s60, s3, 384
    s_add_u32 s60, s60, {STG+49152}
    v_add_u32 v{SA}, s60, v{T0+2}
    s_mul_i32 s60, s36, 384
    s_add_u32 s60, s60, {STG+49152}
    v_add_u32 v{PA}, s60, v{T0+2}
    s_nop 7''')
    for qi in range(NT):
        a(f'ds_write_b32 v{SA}, v{NM+qi*4} offset:{qi*128}\nds_write_b32 v{SA}, v{L0+qi*4} offset:{qi*128+64}')
    a('s_waitcnt lgkmcnt(0)\ns_barrier')
    for qi in range(NT):
        a(f'ds_read_b32 v{S0+qi*8}, v{PA} offset:{qi*128}\nds_read_b32 v{S0+qi*8+1}, v{PA} offset:{qi*128+64}')
    a('s_waitcnt lgkmcnt(0)')
    for qi in range(NT):
        b = S0 + qi*8
        a(f'''v_min_f32 v{b+2}, v{b}, v{NM+qi*4}
        v_sub_f32 v{b+3}, v{b+2}, v{NM+qi*4}
        v_sub_f32 v{b+4}, v{b+2}, v{b}
        v_exp_f32 v{b+3}, v{b+3}
        v_exp_f32 v{b+4}, v{b+4}
        v_mul_f32 v{b+5}, v{b+3}, v{L0+qi*4}
        v_fma_f32 v{b+5}, v{b+4}, v{b+1}, v{b+5}
        v_rcp_f32 v{b+5}, v{b+5}
        v_mul_f32 v{b+6}, v{b+3}, v{b+5}''')
        for t in range(8):
            for i in range(4): a(f'v_mul_f32 v{O(t,qi)+i}, v{b+6}, v{O(t,qi)+i}')
    a(f'''s_mul_i32 s60, s3, 6144
    s_add_u32 s60, s60, {STG}
    v_add_u32 v{SA}, s60, v{L16}
    s_mul_i32 s60, s36, 6144
    s_add_u32 s60, s60, {STG}
    v_add_u32 v{PA}, s60, v{L16}''')
    lK1 = a.lab(); lE = a.lab()
    a(f's_cmp_lg_u32 s34, 0\ns_cbranch_scc1 {lK1}')
    for kg in range(2):
        if kg == 1: a(f'{lK1}:')
        keep = 4*kg; send = 4*(1-kg)
        for rho in range(2):
            for qi in range(NT):
                for tt in range(2): a(f'ds_write_b128 v{SA}, {vr(O(send+2*rho+tt,qi),4)} offset:{(qi*2+tt)*1024}')
            a('s_waitcnt lgkmcnt(0)\ns_barrier')
            for qi in range(NT):
                for tt in range(2): a(f'ds_read_b128 {vr(FR+(qi*2+tt)*4,4)}, v{PA} offset:{(qi*2+tt)*1024}')
            a('s_waitcnt lgkmcnt(0)\ns_barrier')
            for qi in range(NT):
                for tt in range(2):
                    for i in range(4):
                        r = O(keep+2*rho+tt,qi)+i
                        a(f'v_add_f32 v{r}, v{r}, v{FR+(qi*2+tt)*4+i}')
        a(f'''s_mul_i32 s60, s32, 9
        s_add_u32 s60, s60, s35
        s_lshl_b32 s60, s60, 7
        s_lshl_b32 s61, s33, 2
        s_add_u32 s60, s60, s61
        s_add_u32 s60, s60, {2*kg}
        s_lshl_b32 s60, s60, 10''')
        for qi in range(NT):
            for uu in range(2):
                t0, t1 = keep+2*uu, keep+2*uu+1
                d = FR + (qi*2+uu)*4
                a(f'''v_cvt_pk_bf16_f32 v{d}, v{O(t0,qi)}, v{O(t0,qi)+1}
                v_cvt_pk_bf16_f32 v{d+1}, v{O(t0,qi)+2}, v{O(t0,qi)+3}
                v_cvt_pk_bf16_f32 v{d+2}, v{O(t1,qi)}, v{O(t1,qi)+1}
                v_cvt_pk_bf16_f32 v{d+3}, v{O(t1,qi)+2}, v{O(t1,qi)+3}
                s_add_u32 s61, s60, {qi*131072+uu*1024}
                buffer_store_dwordx4 {vr(d,4)}, v{L16}, s[20:23], s61 offen''')
        if kg == 0: a(f's_branch {lE}')
    a(f'{lE}:')
    if int(OPT['stamp']):
        a(f's_memtime s[74:75]\ns_waitcnt lgkmcnt(0)\ns_cmp_eq_u32 s24, 0\ns_cselect_b32 s96, s74, s96\ns_cselect_b32 s99, s99, s74')
    a(f'''s_add_u32 s24, s24, 1
    s_cmp_lt_u32 s24, 2
    s_cbranch_scc1 UNIT_{tag}
    s_waitcnt vmcnt(0)''')
    stamp_out(a)
    a('s_waitcnt vmcnt(0)\ns_endpgm')
    a(f'SLOW_{tag}:')
    slow(False)
class A2(Asm):
    n = 0
    def lab(s):
        A2.n += 1; return f'L{A2.n}'
def k1():
    a = A2()
    if int(OPT['hmap']) == 0:
        HMAP = 's_and_b32 s33, s2, 7\ns_lshl_b32 s33, s33, 2\ns_bfe_u32 s60, s2, 0x20003\ns_add_u32 s33, s33, s60\ns_lshr_b32 s32, s2, 5'
    else:
        HMAP = 's_and_b32 s33, s2, 3\ns_lshl_b32 s33, s33, 3\ns_bfe_u32 s60, s2, 0x30003\ns_add_u32 s33, s33, s60\ns_bfe_u32 s32, s2, 0x10002\ns_lshl_b32 s32, s32, 2\ns_lshr_b32 s60, s2, 6\ns_add_u32 s32, s32, s60'
    ROT = 's_mov_b32 s73, 0' if not int(OPT['rot']) else 's_lshr_b32 s73, s2, 3\ns_and_b32 s73, s73, 15'
    EARLY = f"s_and_b32 s26, s2, {OPT['emask']}\ns_cselect_b32 s26, 1, 0" if int(OPT['early']) else 's_mov_b32 s26, 0'
    a(f'''s_cmp_ge_u32 s2, 256
    s_cbranch_scc1 K1_EXIT
    s_load_dwordx8 s[76:83], s[0:1], 0
    s_load_dwordx8 s[84:91], s[0:1], 40
    s_load_dwordx2 s[56:57], s[0:1], 96
    v_and_b32 v{LANE}, 63, v0
    v_lshrrev_b32 v1, 6, v0
    v_lshlrev_b32 v{L16}, 4, v{LANE}
    v_readfirstlane_b32 s3, v1
    {HMAP}
    s_lshl_b32 s60, s3, 2
    s_lshr_b32 s35, 0x75375300, s60
    s_and_b32 s35, s35, 15
    s_lshr_b32 s36, 0x43276501, s60
    s_and_b32 s36, s36, 15
    s_lshr_b32 s34, 0xE2, s3
    s_and_b32 s34, s34, 1
    s_mov_b32 s64, 0x41000000
    s_mov_b32 s65, 0x3e0293ee
    s_mov_b32 s24, 0
    {EARLY}
    {ROT}
    s_mov_b32 s27, 0
    s_mov_b32 s28, 0
    s_mov_b32 s29, 0
    s_mov_b32 s31, 0
    s_lshl_b32 s60, s32, 5
    s_add_u32 s60, s60, s33
    s_lshl_b32 s60, s60, 18
    s_mul_i32 s61, s32, 147456
    s_lshl_b32 s62, s33, 8
    s_waitcnt lgkmcnt(0)
    s_add_u32 s40, s78, s60
    s_addc_u32 s41, s79, 0
    s_add_u32 s44, s80, s60
    s_addc_u32 s45, s81, 0
    s_add_u32 s42, s86, s60
    s_addc_u32 s43, s87, 0
    s_add_u32 s46, s88, s60
    s_addc_u32 s47, s89, 0
    s_add_u32 s48, s76, s61
    s_addc_u32 s49, s77, 0
    s_add_u32 s50, s84, s61
    s_addc_u32 s51, s85, 0
    s_add_u32 s52, s82, s62
    s_addc_u32 s53, s83, 0
    s_add_u32 s54, s90, s62
    s_addc_u32 s55, s91, 0
    s_mov_b32 s4, s40
    s_mov_b32 s5, s41
    s_mov_b32 s8, s44
    s_mov_b32 s9, s45''')
    if int(OPT['stamp']):
        a('s_memrealtime s[74:75]\ns_waitcnt lgkmcnt(0)\ns_mov_b32 s92, s74')
        stamp(a, 1)
    nrKV = 0 if int(OPT['nold']) else 262144
    srd(a, 4, nrKV); srd(a, 8, nrKV); srd(a, 12, 0 if int(OPT['nox']) else 147456); srd(a, 16, 0 if int(OPT['nowq']) else 4194304); srd(a, 20, 9437184)
    if int(OPT['cw']):
        a(f'''s_getpc_b64 s[60:61]
        PCREF:
        s_lshl_b32 s62, s3, 13
        v_lshlrev_b32 v252, 7, v{LANE}
        v_add_u32 v252, s62, v252
        v_min_u32 v252, CODE_END-PCREF-4, v252
        v_mov_b32 v253, s61
        v_add_co_u32 v252, vcc, s60, v252
        v_addc_co_u32 v253, vcc, 0, v253, vcc
        global_load_dword v255, v[252:253], off''')
    k1_touch(a, 0)
    if int(OPT['early']): k1_touch(a, 1)
    a(f'''v_and_b32 v1, 15, v{LANE}
    v_lshrrev_b32 v2, 4, v{LANE}
    v_and_b32 v3, 7, v1
    v_lshlrev_b32 v3, 1, v3
    s_lshl_b32 s60, s34, 13
    v_lshlrev_b32 v4, 8, v1
    v_add_u32 v4, s60, v4''')
    for s in range(4):
        a(f'v_add_u32 v5, {4*s}, v2\nv_xor_b32 v5, v5, v3\nv_lshl_add_u32 v{KA+s}, v5, 4, v4')
    a(f'''v_lshrrev_b32 v1, 2, v{LANE}
    v_and_b32 v3, 7, v1
    v_lshlrev_b32 v3, 1, v3
    v_bfe_u32 v5, v{LANE}, 1, 1
    v_xor_b32 v5, v5, v3
    v_lshlrev_b32 v5, 4, v5
    v_and_b32 v6, 1, v{LANE}
    v_lshl_add_u32 v5, v6, 3, v5
    v_lshl_add_u32 v5, v1, 8, v5
    s_add_u32 s60, s60, 16384
    v_add_u32 v5, s60, v5''')
    for t in range(8): a(f'v_xor_b32 v{VA+t}, {32*t}, v5')
    a(f'''v_bfe_u32 v1, v{LANE}, 2, 2
    v_lshl_add_u32 v3, v2, 3, v1
    v_lshlrev_b32 v3, 8, v3
    s_and_b32 s60, s3, 3
    s_lshl_b32 s60, s60, 2
    v_and_b32 v5, 3, v{LANE}
    v_add_u32 v5, s60, v5
    v_lshlrev_b32 v1, 2, v1
    v_xor_b32 v5, v5, v1
    v_lshl_add_u32 v3, v5, 4, v3
    v_add_u32 v{AQ}, {STG}, v3''')
    for i in range(4): a(f'v_mov_b32 v{ONES+i}, 0x3f803f80')
    if int(OPT['prio']):
        a('s_cmp_ge_u32 s3, 4\ns_cbranch_scc0 K1_NOPRIO\ns_setprio 1\nK1_NOPRIO:')
    a('''s_and_b32 s39, s3, 1
    s_lshr_b32 s60, s3, 2
    s_lshl_b32 s60, s60, 1
    s_add_u32 s39, s39, s60
    s_cmp_lt_u32 s3, 2
    s_cbranch_scc1 K1_A
    s_cmp_lt_u32 s3, 4
    s_cbranch_scc1 K1_J1
    s_cmp_lt_u32 s3, 6
    s_cbranch_scc1 K1_J2
    s_branch K1_D
    K1_J1:
    s_branch K1_B
    K1_J2:
    s_branch K1_C''')
    st = int(OPT['stag'])
    k1_variant(a, 3, False, 5, 0, 'A'); k1_variant(a, 2, True, 5, 0, 'B'); k1_variant(a, 2, False, 4, st, 'C'); k1_variant(a, 2, True, 4, st, 'D')
    a('K1_EXIT:\ns_endpgm')
    return a.text()
from gen2 import k2
from gen3 import k2n, k3
def desc(name, vg, sg=102):
    return f'''.amdhsa_kernel {name}
  .amdhsa_next_free_vgpr {vg}
  .amdhsa_next_free_sgpr {sg}
  .amdhsa_accum_offset {(vg+3)//4*4}
  .amdhsa_group_segment_fixed_size 0
  .amdhsa_kernarg_size 104
  .amdhsa_user_sgpr_count 2
  .amdhsa_user_sgpr_kernarg_segment_ptr 1
  .amdhsa_system_sgpr_workgroup_id_x 1
.end_amdhsa_kernel
'''
hdr = open('cdna_kernels/' + NAME + '.s.ref').read().split('; Override')[0]
k2text, k2lds, k2grid, k2vg = k2(A2, OPT) if int(OPT['k2v']) == 1 else k2n(A2, int(OPT.get('k2x', 0)))
L3 = T3 = D3 = ''
if int(OPT['k2v']) == 2:
    k3text, k3lds, k3grid, k3vg = k3(A2)
    L3 = f'; @launch kernel=mha_osum_kernel grid=({k3grid},1,1) block=(576,1,1) lds=0\n'
    T3 = f'.globl mha_osum_kernel\n.p2align 8\n.type mha_osum_kernel,@function\nmha_osum_kernel:\n{k3text}\n'
    D3 = f".p2align 6\n{desc('mha_osum_kernel', k3vg)}"
out = hdr + f'''; @launch kernel=mha_attn_kernel grid=(256,1,1) block=(512,1,1) lds={LDS1}
; @launch kernel=mha_oproj_kernel grid=({k2grid},1,1) block=(512,1,1) lds={k2lds}
{L3}.amdgcn_target "amdgcn-amd-amdhsa--gfx950"
.text
.globl mha_attn_kernel
.p2align 8
.type mha_attn_kernel,@function
mha_attn_kernel:
{k1()}
.globl mha_oproj_kernel
.p2align 8
.type mha_oproj_kernel,@function
mha_oproj_kernel:
{k2text}
{T3}CODE_END:
.section .rodata,"a"
.p2align 6
{desc('mha_attn_kernel', 256)}
.p2align 6
{desc('mha_oproj_kernel', k2vg)}
{D3}'''
open(sys.argv[1], 'w').write(out)
```

```python
import sys
from asmlib import *
NAME = 'concat_heads__mha_block_cached__mha_block_cached__near_ridge'
STG = 98304; CH = 17408; LDS1 = STG + 3*CH
OPT = dict(nt='', prio=0, stamp=0, nold=0, rot=0, hmap=0, stag=1, nox=0, nowq=0, touch=1, early=0, emask=32, ring4=1, cw=0, k2v=1, wot=1, kvc=1, ost=0, qs=1)
for a in sys.argv[2:]:
    k, v = a.split('='); OPT[k] = v
R4 = int(OPT['ring4']); NSLOT = 4 if R4 else 3
NTF = ' nt' if OPT['nt'] == '1' else ''
L0=96; Q0=108; S0=156; NM=180; FR=192; KA=224; VA=228; ONES=236; VE=240; VO=241; L16=242; AQ=243; LANE=244; T0=245; TM=252
STAMP_N = [0]
def stamp(a, i):
    if int(OPT['stamp']):
        a(f's_memtime s[74:75]\ns_waitcnt lgkmcnt(0)\ns_mov_b32 s{92+i}, s74')
def stamp_out(a):
    if int(OPT['stamp']):
        a("""s_memrealtime s[74:75]
        s_waitcnt lgkmcnt(0)
        s_mov_b32 s101, s74
        s_add_u32 s76, s56, 0x4000000
        s_addc_u32 s77, s57, 0
        s_mov_b32 s78, 0x100000
        s_mov_b32 s79, 0x20000
        s_lshl_b32 s60, s2, 3
        s_add_u32 s60, s60, s3
        s_lshl_b32 s60, s60, 6
        v_mov_b32 v1, 0""")
        for i in range(10):
            a(f'v_mov_b32 v2, s{92+i}\nbuffer_store_dword v2, v1, s[76:79], s60 offen offset:{i*4}')
def srd(a, base, nrec):
    a(f's_mov_b32 s{base+2}, {nrec}\ns_mov_b32 s{base+3}, 0x20000')
def k1_dma_pieces():
    P = []
    P.append('s_lshl_b32 s60, s39, 12\ns_add_u32 s61, s28, s60\ns_add_u32 s62, s27, s60\ns_mov_b32 m0, s61\n' +
             f'buffer_load_dwordx4 v{VE}, s[4:7], s62 offen offset:0{NTF} lds')
    for j in range(1, 4):
        P.append(f'buffer_load_dwordx4 v{VE if j%2==0 else VO}, s[4:7], s62 offen offset:{j*1024}{NTF} lds')
    P.append(f's_add_u32 m0, s61, 16384\nbuffer_load_dwordx4 v{VE}, s[8:11], s62 offen offset:0{NTF} lds')
    for j in range(1, 4):
        P.append(f'buffer_load_dwordx4 v{VE if j%2==0 else VO}, s[8:11], s62 offen offset:{j*1024}{NTF} lds')
    return P
def k1_dma_advance(a):
    lab = a.lab()
    nr = 0 if int(OPT['nold']) else 262144
    a(f'''s_add_u32 s28, s28, 32768
    s_cmp_eq_u32 s28, {NSLOT*32768}
    s_cselect_b32 s28, 0, s28
    s_add_u32 s27, s27, 16384
    s_cmp_lg_u32 s27, 262144
    s_cbranch_scc1 {lab}
    s_mov_b32 s27, 0
    s_mov_b32 s4, s42
    s_mov_b32 s5, s43
    s_mov_b32 s8, s46
    s_mov_b32 s9, s47
    s_add_u32 s29, s29, 1
    s_cmp_eq_u32 s29, 1
    s_cselect_b32 s6, {nr}, 0
    s_cselect_b32 s10, {nr}, 0
    {lab}:''')
def k1_dma_kv(a):
    for p in k1_dma_pieces(): a(p)
    k1_dma_advance(a)
def k1_touch(a, br):
    if not int(OPT['touch']): return
    l1 = a.lab(); l2 = a.lab()
    xb = 76 + 8*br; wb = 82 + 8*br
    a(f'''s_lshr_b32 s60, s2, 3
    s_lshl_b32 s60, s60, 3
    s_add_u32 s60, s60, s3
    s_cmp_lt_u32 s60, 64
    s_cbranch_scc0 {l1}
    s_mov_b32 s12, s{wb}
    s_mov_b32 s13, s{wb+1}
    s_mov_b32 s14, 4194304
    s_lshl_b32 s60, s60, 16
    s_and_b32 s61, s2, 7
    s_lshl_b32 s61, s61, 10
    s_add_u32 s60, s60, s61
    v_lshrrev_b32 v253, 3, v{LANE}
    v_and_b32 v254, 7, v{LANE}
    v_lshlrev_b32 v254, 7, v254
    v_lshl_add_u32 v253, v253, 13, v254
    buffer_load_dword v255, v253, s[12:15], s60 offen
    s_branch {l2}
    {l1}:
    s_mov_b32 s12, s{xb}
    s_mov_b32 s13, s{xb+1}
    s_mov_b32 s14, 1179648
    s_sub_u32 s60, s60, 64
    s_lshl_b32 s60, s60, 13
    v_lshlrev_b32 v253, 7, v{LANE}
    buffer_load_dword v255, v253, s[12:15], s60 offen
    {l2}:
    s_mov_b32 s14, {0 if int(OPT['nox']) else 147456}''')
def k1_dma_kv_old(a):
    a('s_lshl_b32 s60, s39, 12\ns_add_u32 s61, s28, s60\ns_add_u32 s60, s27, s60\ns_mov_b32 m0, s61')
    for j in range(4):
        a(f'buffer_load_dwordx4 v{VE if j%2==0 else VO}, s[4:7], s60 offen offset:{j*1024}{NTF} lds')
    a('s_add_u32 m0, s61, 16384')
    for j in range(4):
        a(f'buffer_load_dwordx4 v{VE if j%2==0 else VO}, s[8:11], s60 offen offset:{j*1024}{NTF} lds')
    lab = a.lab()
    a(f'''s_add_u32 s28, s28, 32768
    s_cmp_eq_u32 s28, 98304
    s_cselect_b32 s28, 0, s28
    s_add_u32 s27, s27, 16384
    s_cmp_lg_u32 s27, 262144
    s_cbranch_scc1 {lab}
    s_mov_b32 s27, 0
    s_mov_b32 s4, s42
    s_mov_b32 s5, s43
    s_mov_b32 s8, s46
    s_mov_b32 s9, s47
    s_add_u32 s29, s29, 1
    s_cmp_eq_u32 s29, 1
    s_cselect_b32 s6, {0 if int(OPT['nold']) else 262144}, 0
    s_cselect_b32 s10, {0 if int(OPT['nold']) else 262144}, 0
    {lab}:''')
def k1_dma_proj(a0, c, part='xw'):
    P = []
    class _A:
        def __call__(s, t): P.append(t)
    a = _A()
    k1_dma_proj_(a, c, part)
    P = [P[0] + '\n' + P[1]] + P[2:]
    if a0 is None: return P
    for p in P: a0(p)
def k1_dma_proj_(a, c, part):
    base = STG + (c % 3) * CH
    a(f's_add_u32 s37, s73, {c}\ns_and_b32 s37, s37, 15\ns_lshl_b32 s38, s37, 18\ns_lshl_b32 s37, s37, 6')
    if 'x' in part:
        a(f's_add_u32 m0, s67, {base}\ns_add_u32 s60, s66, s37\nbuffer_load_dwordx4 v{VE}, s[12:15], s60 offen lds')
        a(f's_add_u32 m0, s67, {base+4096}\ns_add_u32 s60, s60, {4*16384}\nbuffer_load_dwordx4 v{VE}, s[12:15], s60 offen lds')
        a(f's_mov_b32 m0, {base+8192}\ns_add_u32 s60, s37, {8*16384}\ns_mov_b64 exec, s[68:69]\nbuffer_load_dwordx4 v{VE}, s[12:15], s60 offen lds\ns_mov_b64 exec, -1')
    if 'w' in part:
        VWQ = VO if part == 'xw' else 100
        a(f's_add_u32 m0, s71, {base+9216}\ns_add_u32 s60, s70, s38\nbuffer_load_dwordx4 v{VWQ}, s[16:19], s60 offen lds')
        a(f's_add_u32 m0, s71, {base+9216+1024}\ns_add_u32 s60, s60, {4*8192}\nbuffer_load_dwordx4 v{VWQ}, s[16:19], s60 offen lds')
def k1_qproj(a, NQ, kvload):
    q0 = 0 if NQ == 5 else 5
    ACC = lambda T, qi: (T*5+qi)*4
    AF = lambda st, T: 40 + st*8 + T*4
    BF = lambda st, qi: 56 + st*20 + qi*4
    for i in range(40): a(f'v_mov_b32 v{i}, 0')
    def reads(c):
        st = c & 1; base = (c % 3) * CH
        for T in range(2):
            for H in range(2):
                a(f'ds_read_b64_tr_b16 {vr(AF(st,T)+2*H,2)}, v{AQ} offset:{base+9216+H*1024+T*8}')
        for qi in range(NQ):
            a(f'ds_read_b128 {vr(BF(st,qi),4)}, v{T0} offset:{base+(q0+qi)*1024}')
    a(f'''v_and_b32 v{T0}, 15, v{LANE}
    v_lshrrev_b32 v{T0+1}, 2, v{T0}
    v_sub_u32 v{T0+1}, 0, v{T0+1}
    v_lshrrev_b32 v{T0+2}, 4, v{LANE}
    v_xor_b32 v{T0+1}, v{T0+1}, v{T0+2}
    v_and_b32 v{T0+1}, 3, v{T0+1}
    v_lshlrev_b32 v{T0+1}, 4, v{T0+1}
    v_lshl_add_u32 v{T0}, v{T0}, 6, v{T0+1}
    v_add_u32 v{T0}, {STG}, v{T0}''')
    QS = int(OPT['qs'])
    part = ('w' if kvload else 'x') if QS else (None if kvload else 'xw')
    per = {'w': 2, 'x': 3, 'xw': 5, None: 0}[part]
    if QS and kvload:
        a(f'''v_lshrrev_b32 v101, 4, v{LANE}
        v_and_b32 v102, 15, v{LANE}
        v_lshlrev_b32 v103, 2, v101
        v_xor_b32 v103, v102, v103
        v_lshlrev_b32 v103, 4, v103
        v_lshl_add_u32 v100, v101, 13, v103
        s_lshl_b32 s70, s39, 16
        s_lshl_b32 s71, s39, 11''')
    if part:
        for c in range(3): k1_dma_proj(a, c, part)
        a(f's_waitcnt vmcnt({2*per})')
    a('s_barrier')
    reads(0)
    for c in range(16):
        if c < 15:
            if part: a(f's_waitcnt vmcnt({per if c < 14 else 0})')
            a('s_waitcnt lgkmcnt(0)\ns_barrier')
            reads(c + 1)
        else:
            a('s_waitcnt lgkmcnt(0)')
        st = c & 1
        P = k1_dma_proj(None, c + 3, part) if (part and c + 3 < 16) else []
        if kvload and c == (14 if QS else int(OPT['kvc'])):
            lk = a.lab()
            a(f's_cmp_eq_u32 s24, 0\ns_cbranch_scc0 {lk}')
            for _ in range(3): k1_dma_kv(a)
            a(f'{lk}:')
        for qi in range(NQ):
            for T in range(2):
                a(f'v_mfma_f32_16x16x32_bf16 {vr(ACC(T,qi),4)}, {vr(AF(st,T),4)}, {vr(BF(st,qi),4)}, {vr(ACC(T,qi),4)}')
            if P: a(P.pop(0))
        for p in P: a(p)
    a('s_barrier')
    a(f's_and_b32 s60, s3, 3\ns_lshl_b32 s60, s60, 10\ns_add_u32 s60, s60, {STG}\nv_add_u32 v{T0}, s60, v{L16}')
    for qi in range(NQ):
        for T in range(2):
            for i in range(4): a(f'v_mul_f32 v{ACC(T,qi)+i}, s65, v{ACC(T,qi)+i}')
        d = 40 + qi*4
        a(f'''v_cvt_pk_bf16_f32 v{d}, v{ACC(0,qi)}, v{ACC(0,qi)+1}
        v_cvt_pk_bf16_f32 v{d+1}, v{ACC(0,qi)+2}, v{ACC(0,qi)+3}
        v_cvt_pk_bf16_f32 v{d+2}, v{ACC(1,qi)}, v{ACC(1,qi)+1}
        v_cvt_pk_bf16_f32 v{d+3}, v{ACC(1,qi)+2}, v{ACC(1,qi)+3}
        ds_write_b128 v{T0}, {vr(d,4)} offset:{(q0+qi)*4096}''')
    a('s_waitcnt lgkmcnt(0)\ns_barrier')
def k1_variant(a, NT, kvload, NQ, stag, tag):
    O = lambda t, qi: (t*NT+qi)*4
    Q = lambda qi, s: Q0 + (qi*4+s)*4
    S = lambda qi, kt: S0 + qi*8 + kt*4
    F = lambda n: FR + n*4
    a(f'K1_{tag}:')
    if kvload:
        a(f'''v_lshrrev_b32 v{T0}, 4, v{LANE}
        v_and_b32 v{T0+1}, 15, v{LANE}
        v_lshlrev_b32 v{T0+2}, 1, v{T0}
        v_xor_b32 v{T0+3}, v{T0+1}, v{T0+2}
        v_lshlrev_b32 v{T0+3}, 4, v{T0+3}
        v_lshl_add_u32 v{VE}, v{T0}, 8, v{T0+3}
        v_xor_b32 v{VO}, 128, v{VE}''')
        if int(OPT['kvc']) < 0:
            for _ in range(3): k1_dma_kv(a)
    else:
        a(f'''v_lshrrev_b32 v{T0}, 4, v{LANE}
        v_and_b32 v{T0+1}, 15, v{LANE}
        v_lshrrev_b32 v{T0+2}, 2, v{LANE}
        v_sub_u32 v{T0+3}, 0, v{T0}
        v_xor_b32 v{T0+3}, v{T0+3}, v{LANE}
        v_and_b32 v{T0+3}, 3, v{T0+3}
        v_lshlrev_b32 v{T0+3}, 4, v{T0+3}
        v_lshl_add_u32 v{VE}, v{T0+2}, 10, v{T0+3}
        v_lshlrev_b32 v{T0+2}, 2, v{T0}
        v_xor_b32 v{T0+3}, v{T0+1}, v{T0+2}
        v_lshlrev_b32 v{T0+3}, 4, v{T0+3}
        v_lshl_add_u32 v{VO}, v{T0}, 13, v{T0+3}
        s_mov_b32 s60, s39
        s_lshl_b32 s66, s60, 14
        s_lshl_b32 s67, s60, 10
        s_lshl_b32 s70, s60, 16
        s_lshl_b32 s71, s60, 11
        s_lshl_b32 s61, s60, 4
        s_mov_b64 s[68:69], 0xffff
        s_lshl_b64 s[68:69], s[68:69], s61''')
    a(f'UNIT_{tag}:')
    def readq():
        a(f's_lshl_b32 s60, s35, 12\ns_add_u32 s60, s60, {STG}\nv_add_u32 v{T0}, s60, v{L16}')
        for qi in range(NT):
            for s in range(4): a(f'ds_read_b128 {vr(Q(qi,s),4)}, v{T0} offset:{(qi*4+s)*1024}')
    a(f'''s_mul_i32 s60, s24, 9437184
    s_add_u32 s20, s56, s60
    s_addc_u32 s21, s57, 0
    s_mov_b32 s58, s24
    s_and_b32 s60, s26, s24
    s_cmp_lg_u32 s60, 0
    s_cbranch_scc1 INIT_{tag}
    QP_{tag}:
    s_cmp_eq_u32 s58, 0
    s_cselect_b32 s12, s48, s50
    s_cselect_b32 s13, s49, s51
    s_cselect_b32 s16, s52, s54
    s_cselect_b32 s17, s53, s55''')
    k1_qproj(a, NQ, kvload)
    if int(OPT['stamp']):
        a(f's_memtime s[74:75]\ns_waitcnt lgkmcnt(0)\ns_cmp_eq_u32 s24, 0\ns_cselect_b32 s94, s74, s94\ns_cselect_b32 s97, s97, s74')
    a(f's_cmp_lg_u32 s58, s24\ns_cbranch_scc1 INIT_{tag}')
    readq()
    a(f'''s_cmp_eq_u32 s26, 0
    s_cbranch_scc1 INIT_{tag}
    s_waitcnt lgkmcnt(0)
    s_barrier
    s_mov_b32 s58, 1
    s_branch QP_{tag}
    INIT_{tag}:''')
    for i in range(32*NT): a(f'v_mov_b32 v{i}, 0')
    for i in range(4*NT): a(f'v_mov_b32 v{L0+i}, 0\nv_mov_b32 v{NM+i}, 0')
    def vread(t):
        for T in range(2): a(f'ds_read_b64_tr_b16 {vr(F(t)+2*T,2)}, v{VA+t} offset:{T*4096}')
    def kread(n): a(f'ds_read_b128 {vr(F(n),4)}, v{KA+(n&3)} offset:{(n>>2)*4096}')
    def pv(dma, kreads):
        for t in range(8):
            if not stag: a(f's_waitcnt lgkmcnt({14-2*t})')
            for qi in range(NT):
                a(f'v_mfma_f32_16x16x32_bf16 {vr(O(t,qi),4)}, {vr(F(t),4)}, {vr(S(qi,0),4)}, {vr(O(t,qi),4)}')
            if t == 0:
                for qi in range(NT):
                    a(f'v_mfma_f32_16x16x32_bf16 {vr(L0+qi*4,4)}, {vr(ONES,4)}, {vr(S(qi,0),4)}, {vr(L0+qi*4,4)}')
            if kreads: kread(t)
            if dma: a(dma[t])
    def body(first):
        dma = k1_dma_pieces() if (kvload and (R4 or not first)) else None
        if kvload: a(f's_waitcnt vmcnt({16 if R4 else 8})')
        a('s_waitcnt lgkmcnt(0)\ns_barrier')
        if stag and not first:
            pv(dma, True)
        else:
            for n in range(8): kread(n)
        for n in range(8):
            kt, s = n >> 2, n & 3
            a(f's_waitcnt lgkmcnt({7-n+2*max(n-1,0) if n>0 else 7})')
            for qi in range(NT):
                c = NM + qi*4 if s == 0 else S(qi,kt)
                a(f'v_mfma_f32_16x16x32_bf16 {vr(S(qi,kt),4)}, {vr(F(n),4)}, {vr(Q(qi,s),4)}, {vr(c,4)}')
            if n >= 1: vread(n-1)
            if dma and (first or not stag): a(dma[n])
        if dma: k1_dma_advance(a)
        a(f"""s_add_u32 s31, s31, 1
        s_cmp_eq_u32 s31, {NSLOT}
        s_cselect_b32 s31, 0, s31
        s_mov_b32 s30, 32768
        s_cselect_b32 s30, {hex((1<<32) - (NSLOT-1)*32768)}, s30""")
        for s in range(4): a(f'v_add_u32 v{KA+s}, s30, v{KA+s}')
        if first:
            vread(7)
            slow(True)
        else:
            vals = [S(qi,0)+i for qi in range(NT) for i in range(4)] + [S(qi,1)+i for qi in range(NT) for i in range(4)]
            a(f'v_max3_f32 v{TM}, v{vals[0]}, v{vals[1]}, v{vals[2]}')
            k = 3
            while k + 1 < len(vals):
                a(f'v_max3_f32 v{TM}, v{TM}, v{vals[k]}, v{vals[k+1]}'); k += 2
            if k < len(vals): a(f'v_max_f32 v{TM}, v{TM}, v{vals[k]}')
            a(f'v_cmp_lt_f32 vcc, s64, v{TM}')
            vread(7)
            a(f's_cbranch_vccnz SLOW_{tag}\nBACK_{tag}:')
        for qi in range(NT):
            for i in range(8): a(f'v_exp_f32 v{S0+qi*8+i}, v{S0+qi*8+i}')
            for i in range(4): a(f'v_cvt_pk_bf16_f32 v{S0+qi*8+i}, v{S0+qi*8+2*i}, v{S0+qi*8+2*i+1}')
        if not stag: pv(None, False)
        for t in range(8): a(f'v_add_u32 v{VA+t}, s30, v{VA+t}')
    def slow(first):
        a(f'v_xor_b32 v{T0}, 16, v{LANE}\nv_lshlrev_b32 v{T0}, 2, v{T0}\nv_xor_b32 v{T0+1}, 32, v{LANE}\nv_lshlrev_b32 v{T0+1}, 2, v{T0+1}')
        for qi in range(NT):
            b = S0 + qi*8; m = T0+2+qi
            a(f"""v_max3_f32 v{m}, v{b}, v{b+1}, v{b+2}
            v_max3_f32 v{m}, v{m}, v{b+3}, v{b+4}
            v_max3_f32 v{m}, v{m}, v{b+5}, v{b+6}
            v_max_f32 v{m}, v{m}, v{b+7}
            ds_bpermute_b32 v{TM}, v{T0}, v{m}
            s_waitcnt lgkmcnt(0)
            v_max_f32 v{m}, v{m}, v{TM}
            ds_bpermute_b32 v{TM}, v{T0+1}, v{m}
            s_waitcnt lgkmcnt(0)
            v_max_f32 v{m}, v{m}, v{TM}""")
            if not first: a(f'v_max_f32 v{m}, 0, v{m}')
            for i in range(8): a(f'v_sub_f32 v{b+i}, v{b+i}, v{m}')
            for i in range(4): a(f'v_sub_f32 v{NM+qi*4+i}, v{NM+qi*4+i}, v{m}')
        if first: return
        for qi in range(NT):
            m = T0+2+qi
            a(f'v_sub_f32 v{m}, 0, v{m}\nv_exp_f32 v{m}, v{m}\ns_nop 0')
            for t in range(8):
                for i in range(4): a(f'v_mul_f32 v{O(t,qi)+i}, v{m}, v{O(t,qi)+i}')
            for i in range(4): a(f'v_mul_f32 v{L0+qi*4+i}, v{m}, v{L0+qi*4+i}')
        a(f's_nop 1\ns_branch BACK_{tag}')
    body(True)
    a(f's_mov_b32 s25, 1\nLOOP_{tag}:')
    body(False)
    a(f"""s_add_u32 s25, s25, 1
    s_cmp_lt_u32 s25, 16
    s_cbranch_scc1 LOOP_{tag}""")
    if stag:
        a('s_waitcnt lgkmcnt(0)')
        pv(None, False)
    if int(OPT['stamp']):
        a(f's_memtime s[74:75]\ns_waitcnt lgkmcnt(0)\ns_cmp_eq_u32 s24, 0\ns_cselect_b32 s95, s74, s95\ns_cselect_b32 s98, s98, s74')
    lq = a.lab()
    a(f's_cmp_gt_u32 s26, s24\ns_cbranch_scc0 {lq}')
    readq()
    a(f's_waitcnt lgkmcnt(0)\n{lq}:')
    a('s_barrier')
    if kvload and not R4: k1_dma_kv(a)
    if int(OPT['touch']):
        lt = a.lab()
        a(f's_cmp_lg_u32 s24, 0\ns_cbranch_scc1 {lt}')
        k1_touch(a, 1)
        a(f'{lt}:')
    if int(OPT['wot']):
        lw = a.lab()
        a(f'''s_cmp_eq_u32 s24, 0
        s_cbranch_scc1 {lw}
        s_and_b32 s60, s2, 1
        s_mul_i32 s60, s60, 40
        s_add_u32 s62, s0, s60
        s_addc_u32 s63, s1, 0
        s_load_dwordx2 s[12:13], s[62:63], 32
        s_lshr_b32 s60, s2, 3
        s_lshl_b32 s60, s60, 3
        s_add_u32 s60, s60, s3
        s_lshl_b32 s60, s60, 14
        s_bfe_u32 s61, s2, 0x10001
        s_lshl_b32 s61, s61, 9
        s_add_u32 s60, s60, s61
        v_lshrrev_b32 v253, 2, v{LANE}
        v_and_b32 v254, 3, v{LANE}
        v_lshlrev_b32 v254, 7, v254
        v_lshl_add_u32 v253, v253, 10, v254
        s_mov_b32 s14, 4194304
        s_waitcnt lgkmcnt(0)
        buffer_load_dword v255, v253, s[12:15], s60 offen
        {lw}:''')
    SA = T0; PA = T0+1
    a(f'''v_and_b32 v{T0+2}, 15, v{LANE}
    v_lshlrev_b32 v{T0+2}, 2, v{T0+2}
    s_mul_i32 s60, s3, 384
    s_add_u32 s60, s60, {STG+49152}
    v_add_u32 v{SA}, s60, v{T0+2}
    s_mul_i32 s60, s36, 384
    s_add_u32 s60, s60, {STG+49152}
    v_add_u32 v{PA}, s60, v{T0+2}
    s_nop 7''')
    for qi in range(NT):
        a(f'ds_write_b32 v{SA}, v{NM+qi*4} offset:{qi*128}\nds_write_b32 v{SA}, v{L0+qi*4} offset:{qi*128+64}')
    a('s_waitcnt lgkmcnt(0)\ns_barrier')
    for qi in range(NT):
        a(f'ds_read_b32 v{S0+qi*8}, v{PA} offset:{qi*128}\nds_read_b32 v{S0+qi*8+1}, v{PA} offset:{qi*128+64}')
    a('s_waitcnt lgkmcnt(0)')
    for qi in range(NT):
        b = S0 + qi*8
        a(f'''v_min_f32 v{b+2}, v{b}, v{NM+qi*4}
        v_sub_f32 v{b+3}, v{b+2}, v{NM+qi*4}
        v_sub_f32 v{b+4}, v{b+2}, v{b}
        v_exp_f32 v{b+3}, v{b+3}
        v_exp_f32 v{b+4}, v{b+4}
        v_mul_f32 v{b+5}, v{b+3}, v{L0+qi*4}
        v_fma_f32 v{b+5}, v{b+4}, v{b+1}, v{b+5}
        v_rcp_f32 v{b+5}, v{b+5}
        v_mul_f32 v{b+6}, v{b+3}, v{b+5}''')
        for t in range(8):
            for i in range(4): a(f'v_mul_f32 v{O(t,qi)+i}, v{b+6}, v{O(t,qi)+i}')
    a(f'''s_mul_i32 s60, s3, 6144
    s_add_u32 s60, s60, {STG}
    v_add_u32 v{SA}, s60, v{L16}
    s_mul_i32 s60, s36, 6144
    s_add_u32 s60, s60, {STG}
    v_add_u32 v{PA}, s60, v{L16}''')
    lK1 = a.lab(); lE = a.lab()
    a(f's_cmp_lg_u32 s34, 0\ns_cbranch_scc1 {lK1}')
    for kg in range(2):
        if kg == 1: a(f'{lK1}:')
        keep = 4*kg; send = 4*(1-kg)
        for rho in range(2):
            for qi in range(NT):
                for tt in range(2): a(f'ds_write_b128 v{SA}, {vr(O(send+2*rho+tt,qi),4)} offset:{(qi*2+tt)*1024}')
            a('s_waitcnt lgkmcnt(0)\ns_barrier')
            for qi in range(NT):
                for tt in range(2): a(f'ds_read_b128 {vr(FR+(qi*2+tt)*4,4)}, v{PA} offset:{(qi*2+tt)*1024}')
            a('s_waitcnt lgkmcnt(0)\ns_barrier')
            for qi in range(NT):
                for tt in range(2):
                    for i in range(4):
                        r = O(keep+2*rho+tt,qi)+i
                        a(f'v_add_f32 v{r}, v{r}, v{FR+(qi*2+tt)*4+i}')
        a(f'''s_mul_i32 s60, s32, 9
        s_add_u32 s60, s60, s35
        s_lshl_b32 s60, s60, 7
        s_lshl_b32 s61, s33, 2
        s_add_u32 s60, s60, s61
        s_add_u32 s60, s60, {2*kg}
        s_lshl_b32 s60, s60, 10''')
        for qi in range(NT):
            for uu in range(2):
                t0, t1 = keep+2*uu, keep+2*uu+1
                d = FR + (qi*2+uu)*4
                a(f'''v_cvt_pk_bf16_f32 v{d}, v{O(t0,qi)}, v{O(t0,qi)+1}
                v_cvt_pk_bf16_f32 v{d+1}, v{O(t0,qi)+2}, v{O(t0,qi)+3}
                v_cvt_pk_bf16_f32 v{d+2}, v{O(t1,qi)}, v{O(t1,qi)+1}
                v_cvt_pk_bf16_f32 v{d+3}, v{O(t1,qi)+2}, v{O(t1,qi)+3}
                s_add_u32 s61, s60, {qi*131072+uu*1024}
                buffer_store_dwordx4 {vr(d,4)}, v{L16}, s[20:23], s61 offen{['',' nt',' sc1',' sc0 sc1'][int(OPT['ost'])]}''')
        if kg == 0: a(f's_branch {lE}')
    a(f'{lE}:')
    if int(OPT['stamp']):
        a(f's_memtime s[74:75]\ns_waitcnt lgkmcnt(0)\ns_cmp_eq_u32 s24, 0\ns_cselect_b32 s96, s74, s96\ns_cselect_b32 s99, s99, s74')
    a(f'''s_add_u32 s24, s24, 1
    s_cmp_lt_u32 s24, 2
    s_cbranch_scc1 UNIT_{tag}
    s_waitcnt vmcnt(0)''')
    stamp_out(a)
    a('s_waitcnt vmcnt(0)\ns_endpgm')
    a(f'SLOW_{tag}:')
    slow(False)
class A2(Asm):
    n = 0
    def lab(s):
        A2.n += 1; return f'L{A2.n}'
def k1():
    a = A2()
    if int(OPT['hmap']) == 0:
        HMAP = 's_and_b32 s33, s2, 7\ns_lshl_b32 s33, s33, 2\ns_bfe_u32 s60, s2, 0x20003\ns_add_u32 s33, s33, s60\ns_lshr_b32 s32, s2, 5'
    else:
        HMAP = 's_and_b32 s33, s2, 3\ns_lshl_b32 s33, s33, 3\ns_bfe_u32 s60, s2, 0x30003\ns_add_u32 s33, s33, s60\ns_bfe_u32 s32, s2, 0x10002\ns_lshl_b32 s32, s32, 2\ns_lshr_b32 s60, s2, 6\ns_add_u32 s32, s32, s60'
    ROT = 's_mov_b32 s73, 0' if not int(OPT['rot']) else 's_lshr_b32 s73, s2, 3\ns_and_b32 s73, s73, 15'
    EARLY = f"s_and_b32 s26, s2, {OPT['emask']}\ns_cselect_b32 s26, 1, 0" if int(OPT['early']) else 's_mov_b32 s26, 0'
    a(f'''s_cmp_ge_u32 s2, 256
    s_cbranch_scc1 K1_EXIT
    s_load_dwordx8 s[76:83], s[0:1], 0
    s_load_dwordx8 s[84:91], s[0:1], 40
    s_load_dwordx2 s[56:57], s[0:1], 96
    v_and_b32 v{LANE}, 63, v0
    v_lshrrev_b32 v1, 6, v0
    v_lshlrev_b32 v{L16}, 4, v{LANE}
    v_readfirstlane_b32 s3, v1
    {HMAP}
    s_lshl_b32 s60, s3, 2
    s_lshr_b32 s35, 0x75375300, s60
    s_and_b32 s35, s35, 15
    s_lshr_b32 s36, 0x43276501, s60
    s_and_b32 s36, s36, 15
    s_lshr_b32 s34, 0xE2, s3
    s_and_b32 s34, s34, 1
    s_mov_b32 s64, 0x41000000
    s_mov_b32 s65, 0x3e0293ee
    s_mov_b32 s24, 0
    {EARLY}
    {ROT}
    s_mov_b32 s27, 0
    s_mov_b32 s28, 0
    s_mov_b32 s29, 0
    s_mov_b32 s31, 0
    s_lshl_b32 s60, s32, 5
    s_add_u32 s60, s60, s33
    s_lshl_b32 s60, s60, 18
    s_mul_i32 s61, s32, 147456
    s_lshl_b32 s62, s33, 8
    s_waitcnt lgkmcnt(0)
    s_add_u32 s40, s78, s60
    s_addc_u32 s41, s79, 0
    s_add_u32 s44, s80, s60
    s_addc_u32 s45, s81, 0
    s_add_u32 s42, s86, s60
    s_addc_u32 s43, s87, 0
    s_add_u32 s46, s88, s60
    s_addc_u32 s47, s89, 0
    s_add_u32 s48, s76, s61
    s_addc_u32 s49, s77, 0
    s_add_u32 s50, s84, s61
    s_addc_u32 s51, s85, 0
    s_add_u32 s52, s82, s62
    s_addc_u32 s53, s83, 0
    s_add_u32 s54, s90, s62
    s_addc_u32 s55, s91, 0
    s_mov_b32 s4, s40
    s_mov_b32 s5, s41
    s_mov_b32 s8, s44
    s_mov_b32 s9, s45''')
    if int(OPT['stamp']):
        a('s_memrealtime s[74:75]\ns_waitcnt lgkmcnt(0)\ns_mov_b32 s92, s74')
        stamp(a, 1)
    nrKV = 0 if int(OPT['nold']) else 262144
    srd(a, 4, nrKV); srd(a, 8, nrKV); srd(a, 12, 0 if int(OPT['nox']) else 147456); srd(a, 16, 0 if int(OPT['nowq']) else 4194304); srd(a, 20, 9437184)
    if int(OPT['cw']):
        a(f'''s_getpc_b64 s[60:61]
        PCREF:
        s_lshl_b32 s62, s3, 13
        v_lshlrev_b32 v252, 7, v{LANE}
        v_add_u32 v252, s62, v252
        v_min_u32 v252, CODE_END-PCREF-4, v252
        v_mov_b32 v253, s61
        v_add_co_u32 v252, vcc, s60, v252
        v_addc_co_u32 v253, vcc, 0, v253, vcc
        global_load_dword v255, v[252:253], off''')
    k1_touch(a, 0)
    if int(OPT['early']): k1_touch(a, 1)
    a(f'''v_and_b32 v1, 15, v{LANE}
    v_lshrrev_b32 v2, 4, v{LANE}
    v_and_b32 v3, 7, v1
    v_lshlrev_b32 v3, 1, v3
    s_lshl_b32 s60, s34, 13
    v_lshlrev_b32 v4, 8, v1
    v_add_u32 v4, s60, v4''')
    for s in range(4):
        a(f'v_add_u32 v5, {4*s}, v2\nv_xor_b32 v5, v5, v3\nv_lshl_add_u32 v{KA+s}, v5, 4, v4')
    a(f'''v_lshrrev_b32 v1, 2, v{LANE}
    v_and_b32 v3, 7, v1
    v_lshlrev_b32 v3, 1, v3
    v_bfe_u32 v5, v{LANE}, 1, 1
    v_xor_b32 v5, v5, v3
    v_lshlrev_b32 v5, 4, v5
    v_and_b32 v6, 1, v{LANE}
    v_lshl_add_u32 v5, v6, 3, v5
    v_lshl_add_u32 v5, v1, 8, v5
    s_add_u32 s60, s60, 16384
    v_add_u32 v5, s60, v5''')
    for t in range(8): a(f'v_xor_b32 v{VA+t}, {32*t}, v5')
    a(f'''v_bfe_u32 v1, v{LANE}, 2, 2
    v_lshl_add_u32 v3, v2, 3, v1
    v_lshlrev_b32 v3, 8, v3
    s_and_b32 s60, s3, 3
    s_lshl_b32 s60, s60, 2
    v_and_b32 v5, 3, v{LANE}
    v_add_u32 v5, s60, v5
    v_lshlrev_b32 v1, 2, v1
    v_xor_b32 v5, v5, v1
    v_lshl_add_u32 v3, v5, 4, v3
    v_add_u32 v{AQ}, {STG}, v3''')
    for i in range(4): a(f'v_mov_b32 v{ONES+i}, 0x3f803f80')
    if int(OPT['prio']):
        a('s_cmp_ge_u32 s3, 4\ns_cbranch_scc0 K1_NOPRIO\ns_setprio 1\nK1_NOPRIO:')
    a('''s_and_b32 s39, s3, 1
    s_lshr_b32 s60, s3, 2
    s_lshl_b32 s60, s60, 1
    s_add_u32 s39, s39, s60
    s_cmp_lt_u32 s3, 2
    s_cbranch_scc1 K1_A
    s_cmp_lt_u32 s3, 4
    s_cbranch_scc1 K1_J1
    s_cmp_lt_u32 s3, 6
    s_cbranch_scc1 K1_J2
    s_branch K1_D
    K1_J1:
    s_branch K1_B
    K1_J2:
    s_branch K1_C''')
    st = int(OPT['stag'])
    k1_variant(a, 3, False, 5, 0, 'A'); k1_variant(a, 2, True, 5, 0, 'B'); k1_variant(a, 2, False, 4, st, 'C'); k1_variant(a, 2, True, 4, st, 'D')
    a('K1_EXIT:\ns_endpgm')
    return a.text()
from gen2 import k2
from gen3 import k2n, k3
def desc(name, vg, sg=102):
    return f'''.amdhsa_kernel {name}
  .amdhsa_next_free_vgpr {vg}
  .amdhsa_next_free_sgpr {sg}
  .amdhsa_accum_offset {(vg+3)//4*4}
  .amdhsa_group_segment_fixed_size 0
  .amdhsa_kernarg_size 104
  .amdhsa_user_sgpr_count 2
  .amdhsa_user_sgpr_kernarg_segment_ptr 1
  .amdhsa_system_sgpr_workgroup_id_x 1
.end_amdhsa_kernel
'''
hdr = open('cdna_kernels/' + NAME + '.s.ref').read().split('; Override')[0]
k2text, k2lds, k2grid, k2vg = k2(A2, OPT) if int(OPT['k2v']) == 1 else k2n(A2, int(OPT.get('k2x', 0)))
L3 = T3 = D3 = ''
if int(OPT['k2v']) == 2:
    k3text, k3lds, k3grid, k3vg = k3(A2)
    L3 = f'; @launch kernel=mha_osum_kernel grid=({k3grid},1,1) block=(576,1,1) lds=0\n'
    T3 = f'.globl mha_osum_kernel\n.p2align 8\n.type mha_osum_kernel,@function\nmha_osum_kernel:\n{k3text}\n'
    D3 = f".p2align 6\n{desc('mha_osum_kernel', k3vg)}"
out = hdr + f'''; @launch kernel=mha_attn_kernel grid=(256,1,1) block=(512,1,1) lds={LDS1}
; @launch kernel=mha_oproj_kernel grid=({k2grid},1,1) block=(512,1,1) lds={k2lds}
{L3}.amdgcn_target "amdgcn-amd-amdhsa--gfx950"
.text
.globl mha_attn_kernel
.p2align 8
.type mha_attn_kernel,@function
mha_attn_kernel:
{k1()}
.globl mha_oproj_kernel
.p2align 8
.type mha_oproj_kernel,@function
mha_oproj_kernel:
{k2text}
{T3}CODE_END:
.section .rodata,"a"
.p2align 6
{desc('mha_attn_kernel', 256)}
.p2align 6
{desc('mha_oproj_kernel', k2vg)}
{D3}'''
open(sys.argv[1], 'w').write(out)
```
